```python
import torch

def _softmax(x, axis=-1):
    return torch.softmax(x, dim=axis)
def _gelu(x):
    return torch.nn.functional.gelu(x, approximate="tanh")
def _silu(x):
    return torch.nn.functional.silu(x)
def _sigmoid(x):
    return torch.sigmoid(x)
def _layernorm(x, axis=-1, eps=1e-5):
    m = x.mean(dim=axis, keepdim=True)
    v = x.var(dim=axis, keepdim=True, unbiased=False)
    return (x - m) / torch.sqrt(v + eps)
def _scatter_add(tgt, idx, src, axis=0):
    return tgt.clone().index_add_(axis, idx, src)
def _segment_sum(src, seg, n):
    out = torch.zeros((n,) + src.shape[1:], dtype=src.dtype)
    return out.index_add_(0, seg, src)
def _pad(x, pw):
    flat = tuple(v for pair in reversed(pw) for v in pair)
    return torch.nn.functional.pad(x, flat)

kernel_name = 'gated_mix__mha_block__sliding_block__prompt'

def setup_inputs():

    _w = (lambda a: (lambda t: t.to(torch.bfloat16) if t.is_floating_point() else t)(torch.as_tensor(a)))
    def _A_setup():
        B, S, D, H = 1, 2048, 640, 32
        return {
            "x": _w((lambda *s: torch.randn(*s, dtype=torch.bfloat16) * 0.05)(B, S, D)),
            "wqkv": _w((lambda *s: torch.randn(*s, dtype=torch.bfloat16) * 3.2)(D, 3 * D)),
            "wo": _w((lambda *s: torch.randn(*s, dtype=torch.bfloat16) * 0.1)(D, D)),
        }
    _A_in = _A_setup()

    def _B_setup():
        B, S, D = 1, 2048, 640
        return {
            "x": _w((lambda *s: torch.randn(*s, dtype=torch.bfloat16) * 0.05)(B, S, D)),
            "wqkv": _w((lambda *s: torch.randn(*s, dtype=torch.bfloat16) * 3.2)(D, 3 * D)),
            "wo": _w((lambda *s: torch.randn(*s, dtype=torch.bfloat16) * 0.1)(D, D)),
        }
    _B_in = _B_setup()

    return {
        "A_x": _A_in["x"],
        "A_wqkv": _A_in["wqkv"],
        "A_wo": _A_in["wo"],
        "B_x": _B_in["x"],
        "B_wqkv": _B_in["wqkv"],
        "B_wo": _B_in["wo"],
        "gate_w": _w((lambda *s: torch.randn(*s, dtype=torch.bfloat16) * 0.05)(640) * 16.0),
    }

def reference(A_x, A_wqkv, A_wo, B_x, B_wqkv, B_wo, gate_w):
    def _A_ref(x, wqkv, wo):
        B, S, D = x.shape
        H = 32
        Dh = D // H
        qkv = (lambda x, *d: x.permute(*d))((x @ wqkv).reshape(B, S, 3, H, Dh), 2, 0, 3, 1, 4)
        q, k, v = qkv[0], qkv[1], qkv[2]
        scores = torch.einsum("bhqd,bhkd->bhqk", q, k) * (Dh ** -0.5)
        p = _softmax(scores, axis=-1)
        o = torch.einsum("bhqk,bhkd->bhqd", p, v)
        return (lambda x, *d: x.permute(*d))(o, 0, 2, 1, 3).reshape(B, S, D) @ wo

    def _B_ref(x, wqkv, wo):
        B, S, D = x.shape
        H = 32; Dh = D // H; W = 256
        qkv = (lambda x, *d: x.permute(*d))((x @ wqkv).reshape(B, S, 3, H, Dh), 2, 0, 3, 1, 4)
        q, k, v = qkv[0], qkv[1], qkv[2]
        scores = torch.einsum("bhqd,bhkd->bhqk", q, k) * (Dh ** -0.5)
        idx = torch.arange(S)
        mask = (idx[:, None] - idx[None, :] >= 0) & (idx[:, None] - idx[None, :] < W)
        scores = torch.where(mask[None, None], scores, -1e9)
        p = _softmax(scores, axis=-1)
        o = torch.einsum("bhqk,bhkd->bhqd", p, v)
        return (lambda x, *d: x.permute(*d))(o, 0, 2, 1, 3).reshape(B, S, D) @ wo

    x = A_x
    g = _sigmoid((x * gate_w).sum(-1, keepdims=True))
    a = _A_ref(x, A_wqkv, A_wo)
    b = _B_ref(x, B_wqkv, B_wo)
    return g * a + (1 - g) * b
```

```python
import re

def _expand(tok):
    tok = tok.strip()
    neg = tok.startswith('-')
    if neg: tok = tok[1:]
    if tok.startswith('abs(') and tok.endswith(')'): tok = tok[4:-1]
    m = re.fullmatch(r'([vs])(\d+)', tok)
    if m: return {(m.group(1), int(m.group(2)))}
    m = re.fullmatch(r'([vs])\[(\d+):(\d+)\]', tok)
    if m: return {(m.group(1), i) for i in range(int(m.group(2)), int(m.group(3)) + 1)}
    if tok == 'vcc': return {('s', 106), ('s', 107)}
    if tok == 'exec': return {('s', 126), ('s', 127)}
    if tok == 'm0': return {('s', 124)}
    return set()

TRANS = ('v_exp_f32', 'v_log_f32', 'v_rcp_f32', 'v_rsq_f32', 'v_sqrt_f32', 'v_sin_f32', 'v_cos_f32')

class Ins:
    __slots__ = ('kind', 'w', 'r', 'op', 'passes', 'c', 'ab', 'states')

class Asm:
    def __init__(self):
        self.lines = []
        self.hist = []
        self.nlabel = 0

    def raw(self, s):
        self.lines.append(s)

    def comment(self, s):
        self.lines.append('    ; ' + s)

    def label(self, name):
        self.flush()
        self.lines.append(name + ':')
        self.hist = []

    def newlabel(self, base='L'):
        self.nlabel += 1
        return '%s_%d' % (base, self.nlabel)

    def _dist(self, idx):
        d = 0
        for j in range(idx + 1, len(self.hist)):
            d += self.hist[j].states
        return d

    def _need(self, new):
        need = 0
        n = len(self.hist)
        for i in range(n - 1, max(-1, n - 24), -1):
            p = self.hist[i]
            d = self._dist(i)
            if d >= 20: break
            req = 0
            if p.kind == 'valu':
                vw = {x for x in p.w if x[0] == 'v'}
                sw = {x for x in p.w if x[0] == 's'}
                if new is None:
                    req = max(req, 5 if sw else 0, 2 if vw else 0)
                else:
                    if new.kind == 'mfma' and (vw & new.r): req = max(req, 2)
                    if new.kind == 'valu' and p.op in TRANS and (vw & new.r): req = max(req, 1)
                    if new.kind == 'valu' and (sw & new.r): req = max(req, 2)
                    if new.kind == 'valu' and new.op in ('v_readlane_b32', 'v_writelane_b32') and (sw & new.r): req = max(req, 4)
                    if new.kind in ('vmem',) and (sw & new.r): req = max(req, 5)
                    if new.kind == 'salu' and (sw & new.r): req = max(req, 2)
                    if new.kind == 'valu' and new.op in ('v_readfirstlane_b32', 'v_readlane_b32') and (vw & new.r): req = max(req, 1)
                    if new.kind == 'valu' and new.op.startswith('v_permlane') and (vw & new.r): req = max(req, 2)
                    if new.kind == 'valu' and 'dpp' in new.op and (vw & new.r): req = max(req, 2)
            elif p.kind == 'mfma':
                P = p.passes
                dv = {4: 8, 8: 12}[P]
                ov = {4: 6, 8: 10}[P]
                war = {4: 3, 8: 7}[P]
                if new is None:
                    req = max(req, dv)
                else:
                    if new.kind == 'mfma':
                        if p.w & new.ab: req = max(req, dv)
                        if p.w & new.c:
                            if not (p.w == new.c and new.passes == P): req = max(req, ov)
                        if (p.w & new.w) and not (p.w == new.w):
                            req = max(req, ov)
                    elif new.kind in ('valu', 'vmem', 'ds'):
                        if p.w & (new.r | new.w): req = max(req, dv)
                        if new.kind == 'valu' and (p.c & new.w): req = max(req, war)
            elif p.kind == 'vmem' and p.op.startswith('buffer_store') and ('x4' in p.op or 'x3' in p.op):
                if new is None: req = max(req, 2)
                elif new.kind == 'valu' and (p.r & new.w): req = max(req, 2)
                elif (p.r & new.w): req = max(req, 1)
            elif p.kind == 'ds' and p.op in ('ds_write_b128',):
                if new is None: req = max(req, 1)
                elif new.kind == 'valu' and (p.r & new.w): req = max(req, 1)
            need = max(need, req - d)
        return need

    def _nop(self, k):
        while k > 0:
            c = min(k, 16)
            self.lines.append('    s_nop %d' % (c - 1))
            x = Ins(); x.kind = 'nop'; x.w = set(); x.r = set(); x.op = 's_nop'; x.states = c
            x.passes = 0; x.c = set(); x.ab = set()
            self.hist.append(x)
            k -= c

    def flush(self):
        self._nop(self._need(None))

    def __call__(self, op, *ops, mods=''):
        x = Ins(); x.op = op; x.states = 1; x.passes = 0; x.c = set(); x.ab = set()
        regs = [_expand(str(o)) for o in ops]
        allr = set().union(*regs) if regs else set()
        if op.startswith('v_mfma'):
            x.kind = 'mfma'; x.w = regs[0]; x.ab = regs[1] | regs[2]; x.c = regs[3]; x.r = x.ab | x.c
            x.passes = 8 if '32x32' in op else 4
        elif op.startswith('v_'):
            x.kind = 'valu'
            if op.startswith('v_cmp'):
                x.w = regs[0]; x.r = set().union(*regs[1:])
            elif op.startswith('v_permlane'):
                x.w = allr; x.r = allr
            elif op in ('v_fmac_f32', 'v_dot2c_f32_bf16'):
                x.w = regs[0]; x.r = allr
            else:
                x.w = regs[0]; x.r = set().union(*regs[1:]) if len(regs) > 1 else set()
            if op.startswith('v_cndmask') and len(ops) == 3:
                x.r = x.r | _expand('vcc')
        elif op.startswith('ds_'):
            x.kind = 'ds'
            if op.startswith('ds_write'): x.w = set(); x.r = allr
            else: x.w = regs[0]; x.r = set().union(*regs[1:])
        elif op.startswith('buffer_') or op.startswith('global_'):
            x.kind = 'vmem'
            if 'store' in op: x.w = set(); x.r = allr
            else: x.w = regs[0]; x.r = set().union(*regs[1:])
        else:
            x.kind = 'salu'
            if op.startswith('s_cmp') or op.startswith('s_cbranch') or op in ('s_branch', 's_barrier', 's_waitcnt', 's_endpgm', 's_nop', 's_setprio', 's_sleep'):
                x.w = set(); x.r = allr
            else:
                x.w = regs[0] if regs else set(); x.r = set().union(*regs[1:]) if len(regs) > 1 else set()
        if op.startswith('s_cbranch') or op == 's_branch':
            self.flush()
        else:
            self._nop(self._need(x))
        line = '    ' + op
        if ops: line += ' ' + ', '.join(str(o) for o in ops)
        if mods: line += ' ' + mods
        self.lines.append(line)
        self.hist.append(x)
        if len(self.hist) > 40: self.hist = self.hist[-40:]

    def text(self):
        return '\n'.join(self.lines) + '\n'

def vr(a, n=1):
    return 'v%d' % a if n == 1 else 'v[%d:%d]' % (a, a + n - 1)
def sr(a, n=1):
    return 's%d' % a if n == 1 else 's[%d:%d]' % (a, a + n - 1)
```

```python
import sys
sys.path.insert(0, 'gen')
from emit import Asm, vr, sr

REC_KV = 2624
HSZ_KV = 64 * REC_KV
REC_Q = 1280
HSZ_Q = 64 * REC_Q
KV_A, KV_B = 0x0, 0x600000
Q_A, Q_B = 0xC00000, 0xF00000
O_A, O_B = 0x1200000, 0x1500000
G_OFF = 0x1800000
WS_SIZE = 0x10000000
CSCALE = (20 ** -0.5) * 1.4426950408889634

def f32bits(x):
    import struct
    return struct.unpack('<I', struct.pack('<f', x))[0]

def srd(a, dst, ptr, size):
    a('s_mov_b32', sr(dst), sr(ptr))
    a('s_and_b32', sr(dst + 1), sr(ptr + 1), '0xffff')
    a('s_mov_b32', sr(dst + 2), hex(size))
    a('s_mov_b32', sr(dst + 3), '0x00020000')

def cs(a, dst, t, f):
    a('s_mov_b32', dst, f)
    a('s_cselect_b32', dst, t, dst)

def header(a, name):
    a.raw('.globl %s' % name)
    a.raw('.p2align 8')
    a.raw('.type %s,@function' % name)
    a.raw('%s:' % name)
    a.hist = []

def descriptor(name, vgpr, sgpr=102):
    acc = (vgpr + 3) // 4 * 4
    return '''.p2align 6
.amdhsa_kernel %s
  .amdhsa_next_free_vgpr %d
  .amdhsa_next_free_sgpr %d
  .amdhsa_accum_offset %d
  .amdhsa_group_segment_fixed_size 0
  .amdhsa_kernarg_size 80
  .amdhsa_user_sgpr_count 2
  .amdhsa_user_sgpr_kernarg_segment_ptr 1
  .amdhsa_system_sgpr_workgroup_id_x 1
.end_amdhsa_kernel
''' % (name, vgpr, sgpr, acc)

K1_NWG = 480
K1_GATE_WG = 64
K1_XROW = 144
K1_WROW = 320
K1_XSZ = 128 * K1_XROW
K1_WSZ = 64 * K1_WROW
K1_BUF = K1_XSZ + K1_WSZ
K1_LDS = 2 * K1_BUF

def gen_k1(a):
    name = 'qkv_kernel'
    header(a, name)
    Lexit = 'k1_exit'; Lgate = 'k1_gate'
    a('s_cmp_ge_u32', 's2', K1_NWG + K1_GATE_WG)
    a('s_cbranch_scc1', Lexit)
    a('s_load_dwordx2', 's[4:5]', 's[0:1]', 0)
    a('s_load_dwordx2', 's[6:7]', 's[0:1]', 8)
    a('s_load_dwordx2', 's[8:9]', 's[0:1]', 32)
    a('s_load_dwordx2', 's[10:11]', 's[0:1]', 72)
    a('s_load_dwordx2', 's[36:37]', 's[0:1]', 48)
    a('s_waitcnt', 'lgkmcnt(0)')
    srd(a, 12, 4, 2048 * 640 * 2)
    srd(a, 20, 10, WS_SIZE)
    a('s_cmp_ge_u32', 's2', K1_NWG)
    a('s_cbranch_scc1', Lgate)
    a('s_and_b32', 's24', 's2', 15)
    a('s_lshr_b32', 's25', 's2', 4)
    a('s_mul_i32', 's26', 's25', 205)
    a('s_lshr_b32', 's26', 's26', 10)
    a('s_mul_i32', 's27', 's26', 5)
    a('s_sub_u32', 's27', 's25', 's27')
    a('s_lshl_b32', 's27', 's27', 7)
    a('s_cmp_ge_u32', 's26', 3)
    a('s_cselect_b32', 's6', 's8', 's6')
    a('s_cselect_b32', 's7', 's9', 's7')
    a('s_cselect_b32', 's31', 3, 0)
    a('s_sub_u32', 's31', 's26', 's31')
    srd(a, 16, 6, 640 * 1920 * 2)
    a('s_mul_i32', 's32', 's31', 640)
    a('s_add_u32', 's32', 's32', 's27')
    a('v_lshrrev_b32', 'v1', 6, 'v0')
    a('v_readfirstlane_b32', 's28', 'v1')
    a('s_and_b32', 's29', 's28', 1)
    a('s_lshr_b32', 's30', 's28', 1)
    a('s_lshl_b32', 's33', 's24', 7)
    a('v_lshrrev_b32', 'v2', 3, 'v0')
    a('v_add_u32', 'v2', 's33', 'v2')
    a('s_mov_b32', 's34', 1280)
    a('v_mul_lo_u32', 'v2', 'v2', 's34')
    a('v_and_b32', 'v3', 7, 'v0')
    a('v_lshl_add_u32', 'v2', 'v3', 4, 'v2')
    a('v_lshrrev_b32', 'v3', 4, 'v0')
    a('s_mov_b32', 's34', 3840)
    a('v_mul_lo_u32', 'v3', 'v3', 's34')
    a('v_and_b32', 'v4', 15, 'v0')
    a('v_lshl_add_u32', 'v3', 'v4', 4, 'v3')
    a('s_lshl_b32', 's34', 's32', 1)
    a('v_add_u32', 'v3', 's34', 'v3')
    a('v_lshrrev_b32', 'v4', 3, 'v0')
    a('v_mul_u32_u24', 'v4', K1_XROW, 'v4')
    a('v_and_b32', 'v5', 7, 'v0')
    a('v_lshl_add_u32', 'v4', 'v5', 4, 'v4')
    a('v_add_u32', 'v5', K1_BUF, 'v4')
    a('v_lshrrev_b32', 'v6', 4, 'v0')
    a('v_mul_u32_u24', 'v6', K1_WROW, 'v6')
    a('v_and_b32', 'v7', 15, 'v0')
    a('v_lshl_add_u32', 'v6', 'v7', 4, 'v6')
    a('v_add_u32', 'v6', K1_XSZ, 'v6')
    a('v_add_u32', 'v7', K1_BUF, 'v6')
    a('v_and_b32', 'v12', 63, 'v0')
    a('v_and_b32', 'v13', 31, 'v12')
    a('v_lshrrev_b32', 'v14', 5, 'v12')
    a('s_lshl_b32', 's34', 's29', 6)
    a('v_add_u32', 'v8', 's34', 'v13')
    a('v_mul_u32_u24', 'v8', K1_XROW, 'v8')
    a('v_lshl_add_u32', 'v8', 'v14', 4, 'v8')
    a('v_add_u32', 'v9', K1_BUF, 'v8')
    a('v_and_b32', 'v15', 15, 'v12')
    a('v_lshrrev_b32', 'v10', 2, 'v15')
    a('v_lshl_add_u32', 'v10', 'v14', 3, 'v10')
    a('v_mul_u32_u24', 'v10', K1_WROW, 'v10')
    a('v_bfe_u32', 'v11', 'v12', 4, 1)
    a('v_lshlrev_b32', 'v11', 4, 'v11')
    a('v_and_b32', 'v15', 3, 'v15')
    a('v_lshl_add_u32', 'v11', 'v15', 2, 'v11')
    a('s_lshl_b32', 's34', 's30', 6)
    a('v_add_u32', 'v11', 's34', 'v11')
    a('v_lshl_add_u32', 'v10', 'v11', 1, 'v10')
    a('v_add_u32', 'v10', K1_XSZ, 'v10')
    a('v_add_u32', 'v11', K1_BUF, 'v10')
    for i in range(4):
        a('s_mov_b32', sr(40 + i), 40960 * i)
    ACC = 64; ST = 128; FX = 16; FW = 32

    def issue_loads(s):
        for i in range(4):
            a('buffer_load_dwordx4', vr(ST + 4 * i, 4), 'v2', 's[12:15]', sr(40 + i), mods='offen offset:%d' % (s * 128))
        for i in range(4):
            a('s_mov_b32', 's44', (s * 64 + i * 16) * 3840)
            a('buffer_load_dwordx4', vr(ST + 16 + 4 * i, 4), 'v3', 's[16:19]', 's44', mods='offen')
    def write_lds(buf):
        for i in range(4):
            a('ds_write_b128', 'v%d' % (4 + buf), vr(ST + 4 * i, 4), mods='offset:%d' % (i * 32 * K1_XROW))
        for i in range(4):
            a('ds_write_b128', 'v%d' % (6 + buf), vr(ST + 16 + 4 * i, 4), mods='offset:%d' % (i * 16 * K1_WROW))
    def frag_reads(buf, ks, st):
        for bi in range(2):
            a('ds_read_b128', vr(FX + st * 8 + bi * 4, 4), 'v%d' % (8 + buf), mods='offset:%d' % (bi * 32 * K1_XROW + ks * 32))
        for bj in range(2):
            for hf in range(2):
                a('ds_read_b64_tr_b16', vr(FW + st * 8 + bj * 4 + hf * 2, 2), 'v%d' % (10 + buf),
                  mods='offset:%d' % (ks * 16 * K1_WROW + bj * 64 + hf * 4 * K1_WROW))

    def mainloop(vorient):
        for r in range(64):
            a('v_mov_b32', vr(ACC + r), 0)
        issue_loads(0)
        a('s_waitcnt', 'vmcnt(0)')
        write_lds(0)
        a('s_waitcnt', 'lgkmcnt(0)')
        a('s_barrier')
        for s in range(10):
            buf = s % 2
            if s < 9: issue_loads(s + 1)
            frag_reads(buf, 0, 0)
            for ks in range(4):
                st = ks % 2
                if ks < 3:
                    frag_reads(buf, ks + 1, 1 - st)
                    a('s_waitcnt', 'lgkmcnt(6)')
                else:
                    a('s_waitcnt', 'lgkmcnt(0)')
                for bi in range(2):
                    for bj in range(2):
                        acc = vr(ACC + (bi * 2 + bj) * 16, 16)
                        xf = vr(FX + st * 8 + bi * 4, 4); wf = vr(FW + st * 8 + bj * 4, 4)
                        if vorient: a('v_mfma_f32_32x32x16_bf16', acc, xf, wf, acc)
                        else: a('v_mfma_f32_32x32x16_bf16', acc, wf, xf, acc)
            if s < 9:
                a('s_waitcnt', 'vmcnt(0)')
                write_lds(1 - buf)
                a('s_waitcnt', 'lgkmcnt(0)')
                a('s_barrier')

    Lv = 'k1_vpath'
    a('s_cmp_eq_u32', 's31', 2)
    a('s_cbranch_scc1', Lv)
    mainloop(False)
    a('s_cmp_eq_u32', 's31', 0)
    cs(a, 's45', hex(f32bits(CSCALE)), hex(f32bits(1.0)))
    for r in range(64):
        a('v_mul_f32', vr(ACC + r), 's45', vr(ACC + r))
    cs(a, 's46', HSZ_Q, HSZ_KV)
    cs(a, 's47', REC_Q, REC_KV)
    a('s_cmp_ge_u32', 's26', 3)
    cs(a, 's48', Q_B, Q_A)
    cs(a, 's49', KV_B, KV_A)
    a('s_cmp_eq_u32', 's31', 0)
    a('s_cselect_b32', 's48', 's48', 's49')
    a('s_lshl_b32', 's49', 's24', 2)
    a('s_lshl_b32', 's50', 's29', 1)
    a('s_add_u32', 's49', 's49', 's50')
    a('s_mul_i32', 's49', 's49', 's47')
    a('s_add_u32', 's48', 's48', 's49')
    a('s_add_u32', 's49', 's48', 's47')
    a('s_mov_b64', 's[52:53]', -1)
    a('s_mov_b32', 's52', 0)
    a('s_mov_b64', 's[54:55]', -1)
    a('s_mov_b32', 's55', 0)
    a('s_lshr_b32', 's50', 's27', 2)
    a('s_lshl_b32', 's51', 's30', 4)
    a('s_add_u32', 's50', 's50', 's51')
    T = 48
    for bj in range(2):
        for rg in range(4):
            for h in range(2):
                o = 60 + 3 * h
                a('s_add_u32', 's56', 's50', bj * 8 + 2 * rg + h)
                a('s_mul_i32', 's57', 's56', 205)
                a('s_lshr_b32', 's57', 's57', 10)
                a('s_mul_i32', 's58', 's57', 5)
                a('s_sub_u32', sr(o + 2), 's56', 's58')
                a('s_mul_i32', 's57', 's57', 's46')
                a('s_lshr_b32', 's58', sr(o + 2), 1)
                a('s_lshl_b32', 's58', 's58', 9)
                a('s_and_b32', 's59', sr(o + 2), 1)
                a('s_lshl_b32', 's59', 's59', 3)
                a('s_add_u32', sr(o), 's57', 's58')
                a('s_add_u32', sr(o), sr(o), 's59')
                a('s_add_u32', sr(o + 1), 's57', 1024)
            a('s_mov_b64', 's[66:67]', -1)
            a('s_cmp_eq_u32', 's62', 4)
            a('s_cselect_b64', 's[66:67]', 's[52:53]', 's[66:67]')
            a('s_cmp_eq_u32', 's65', 4)
            a('s_cselect_b64', 's[66:67]', 's[54:55]', 's[66:67]')
            a('v_mov_b32', vr(T), 's60')
            a('v_mov_b32', vr(T + 1), 's63')
            a('v_cndmask_b32', vr(T), vr(T), vr(T + 1), 's[52:53]')
            a('v_lshl_add_u32', vr(T), 'v13', 4, vr(T))
            a('v_mov_b32', vr(T + 2), 's61')
            a('v_mov_b32', vr(T + 1), 's64')
            a('v_cndmask_b32', vr(T + 2), vr(T + 2), vr(T + 1), 's[52:53]')
            a('v_lshl_add_u32', vr(T + 2), 'v13', 2, vr(T + 2))
            for bi in range(2):
                base = ACC + (bi * 2 + bj) * 16 + rg * 4
                a('v_cvt_pk_bf16_f32', vr(T + 4 + bi * 2), vr(base), vr(base + 1))
                a('v_cvt_pk_bf16_f32', vr(T + 5 + bi * 2), vr(base + 2), vr(base + 3))
            a('s_mov_b64', 'exec', 's[66:67]')
            for bi in range(2):
                a('buffer_store_dwordx2', vr(T + 4 + bi * 2, 2), vr(T), 's[20:23]', sr(48 + bi), mods='offen')
            skip = a.newlabel('k1_s')
            a('s_andn2_b64', 'exec', -1, 's[66:67]')
            a('s_cbranch_scc0', skip)
            for bi in range(2):
                a('buffer_store_dword', vr(T + 4 + bi * 2), vr(T + 2), 's[20:23]', sr(48 + bi), mods='offen')
                a('buffer_store_dword', vr(T + 5 + bi * 2), vr(T + 2), 's[20:23]', sr(48 + bi), mods='offen offset:128')
            a.label(skip)
            a('s_mov_b64', 'exec', -1)
    a('s_branch', Lexit)
    a.label(Lv)
    mainloop(True)
    a('s_cmp_ge_u32', 's26', 3)
    cs(a, 's48', KV_B, KV_A)
    a('s_lshl_b32', 's49', 's24', 2)
    a('s_lshl_b32', 's50', 's29', 1)
    a('s_add_u32', 's49', 's49', 's50')
    a('s_mul_i32', 's49', 's49', REC_KV)
    a('s_add_u32', 's48', 's48', 's49')
    a('s_add_u32', 's49', 's48', REC_KV)
    T = 48
    for k in range(4):
        a('v_mov_b32', vr(T + 8 + k), '0x3f803f80')
    for bj in range(2):
        a('s_lshl_b32', 's50', 's30', 6)
        a('s_add_u32', 's50', 's50', 's27')
        a('s_add_u32', 's50', 's50', bj * 32)
        a('v_add_u32', vr(T), 's50', 'v13')
        a('v_mul_u32_u24', vr(T + 1), 3277, vr(T))
        a('v_lshrrev_b32', vr(T + 1), 16, vr(T + 1))
        a('v_mul_u32_u24', vr(T + 2), 20, vr(T + 1))
        a('v_sub_u32', vr(T + 2), vr(T), vr(T + 2))
        a('s_mov_b32', 's51', HSZ_KV)
        a('v_mul_lo_u32', vr(T + 1), vr(T + 1), 's51')
        a('v_lshl_add_u32', vr(T + 1), vr(T + 2), 4, vr(T + 1))
        a('v_mul_u32_u24', vr(T + 3), 336, 'v14')
        a('v_add_u32', vr(T + 1), vr(T + 1), vr(T + 3))
        a('v_add_u32', vr(T + 1), 1280, vr(T + 1))
        a('v_cmp_eq_u32', 's[56:57]', 0, vr(T + 2))
        for bi in range(2):
            base = ACC + (bi * 2 + bj) * 16
            for c in range(2):
                for k in range(4):
                    a('v_cvt_pk_bf16_f32', vr(T + 4 + k), vr(base + c * 8 + 2 * k), vr(base + c * 8 + 2 * k + 1))
                a('buffer_store_dwordx4', vr(T + 4, 4), vr(T + 1), 's[20:23]', sr(48 + bi), mods='offen offset:%d' % (c * 672))
        skip = a.newlabel('k1_v')
        a('s_and_b64', 'exec', 's[56:57]', 's[56:57]')
        a('s_cbranch_scc0', skip)
        for bi in range(2):
            for c in range(2):
                a('buffer_store_dwordx4', vr(T + 8, 4), vr(T + 1), 's[20:23]', sr(48 + bi), mods='offen offset:%d' % (c * 672 + 320))
        a.label(skip)
        a('s_mov_b64', 'exec', -1)
    a('s_branch', Lexit)
    a.label(Lgate)
    srd(a, 16, 36, 640 * 2)
    a('s_sub_u32', 's24', 's2', K1_NWG)
    a('v_lshrrev_b32', 'v1', 3, 'v0')
    a('s_lshl_b32', 's25', 's24', 5)
    a('v_add_u32', 'v1', 's25', 'v1')
    a('v_and_b32', 'v2', 7, 'v0')
    a('v_mul_u32_u24', 'v2', 160, 'v2')
    a('s_mov_b32', 's26', 1280)
    a('v_mul_lo_u32', 'v3', 'v1', 's26')
    a('v_add_u32', 'v3', 'v3', 'v2')
    for i in range(10):
        a('buffer_load_dwordx4', vr(16 + 4 * i, 4), 'v3', 's[12:15]', 0, mods='offen offset:%d' % (16 * i))
    for i in range(10):
        a('buffer_load_dwordx4', vr(56 + 4 * i, 4), 'v2', 's[16:19]', 0, mods='offen offset:%d' % (16 * i))
    a('v_mov_b32', 'v4', 0)
    a('v_mov_b32', 'v5', 0)
    a('s_waitcnt', 'vmcnt(0)')
    for i in range(40):
        a('v_lshlrev_b32', 'v6', 16, vr(16 + i))
        a('v_lshlrev_b32', 'v7', 16, vr(56 + i))
        a('v_fmac_f32', 'v4', 'v6', 'v7')
        a('v_and_b32', 'v6', '0xffff0000', vr(16 + i))
        a('v_and_b32', 'v7', '0xffff0000', vr(56 + i))
        a('v_fmac_f32', 'v5', 'v6', 'v7')
    a('v_add_f32', 'v4', 'v4', 'v5')
    for off in ('0x041F', '0x081F', '0x101F'):
        a('ds_swizzle_b32', 'v5', 'v4', mods='offset:%s' % off)
        a('s_waitcnt', 'lgkmcnt(0)')
        a('v_add_f32', 'v4', 'v4', 'v5')
    a('v_mul_f32', 'v4', hex(f32bits(-1.4426950408889634)), 'v4')
    a('v_exp_f32', 'v4', 'v4')
    a('v_add_f32', 'v4', '1.0', 'v4')
    a('v_rcp_f32', 'v4', 'v4')
    a('v_lshlrev_b32', 'v5', 2, 'v1')
    a('v_and_b32', 'v6', 7, 'v0')
    a('v_cmp_eq_u32', 'vcc', 0, 'v6')
    a('s_and_b64', 'exec', 'vcc', 'vcc')
    a('s_mov_b32', 's27', G_OFF)
    a('buffer_store_dword', 'v4', 'v5', 's[20:23]', 's27', mods='offen')
    a.label(Lexit)
    a('s_endpgm')
    return name, 160

K2_BUF = 49152
K2_LDS = 2 * K2_BUF
TMAX = 32.0

def gen_k2(a):
    name = 'attn_kernel'
    header(a, name)
    Lexit = 'k2_exit'; LB = 'k2_bpath'; Lepi = 'k2_epi'
    Q0 = 16; Q1 = 20; BIAS = 24; S = 40; P = 56; O = 64; K0 = (80, 100); K1 = (84, 104); V = (88, 108); ST = 120
    VM = 12; VTM = 13; VD = 14; VT = 15
    a('s_cmp_ge_u32', 's2', 512)
    a('s_cbranch_scc1', Lexit)
    a('s_load_dwordx2', 's[10:11]', 's[0:1]', 72)
    a('s_waitcnt', 'lgkmcnt(0)')
    srd(a, 20, 10, WS_SIZE)
    a('s_and_b32', 's24', 's2', 31)
    a('s_bfe_u32', 's25', 's2', '0x30005')
    a('s_lshr_b32', 's26', 's2', 8)
    a('v_lshrrev_b32', 'v1', 6, 'v0')
    a('v_readfirstlane_b32', 's27', 'v1')
    a('s_lshl_b32', 's28', 's25', 3)
    a('s_add_u32', 's28', 's28', 's27')
    a('s_cmp_eq_u32', 's26', 0)
    cs(a, 's29', KV_A, KV_B)
    cs(a, 's30', Q_A, Q_B)
    cs(a, 's31', O_A, O_B)
    a('s_mul_i32', 's32', 's24', HSZ_KV)
    a('s_add_u32', 's29', 's29', 's32')
    a('s_mul_i32', 's32', 's24', HSZ_Q)
    a('s_add_u32', 's30', 's30', 's32')
    a('s_mul_i32', 's32', 's28', REC_Q)
    a('s_add_u32', 's30', 's30', 's32')
    a('v_and_b32', 'v2', 63, 'v0')
    a('v_and_b32', 'v3', 31, 'v2')
    a('v_lshrrev_b32', 'v4', 5, 'v2')
    a('v_lshlrev_b32', 'v5', 4, 'v2')
    a('v_lshlrev_b32', 'v6', 2, 'v2')
    a('buffer_load_dwordx4', vr(Q0, 4), 'v5', 's[20:23]', 's30', mods='offen')
    a('buffer_load_dword', vr(Q1), 'v6', 's[20:23]', 's30', mods='offen offset:1024')
    for k in range(1, 4):
        a('v_mov_b32', vr(Q1 + k), 0)
        a('v_mov_b32', vr(K1[0] + k), 0)
        a('v_mov_b32', vr(K1[1] + k), 0)
    a('v_add_u32', 'v6', 1024, 'v6')
    a('v_min_u32', 'v7', 20, 'v3')
    a('v_subrev_u32', 'v8', 24, 'v3')
    a('v_cmp_le_u32', 'vcc', 28, 'v3')
    a('v_cndmask_b32', 'v7', 'v7', 'v8', 'vcc')
    a('v_lshlrev_b32', 'v7', 4, 'v7')
    a('v_mul_u32_u24', 'v8', 336, 'v4')
    a('v_add_u32', 'v7', 'v7', 'v8')
    a('v_add_u32', 'v7', 1280, 'v7')
    a('v_lshlrev_b32', 'v9', 4, 'v0')
    a('s_mov_b32', 's40', hex(f32bits(TMAX)))
    a('v_lshlrev_b32', 'v10', 2, 'v4')
    a('v_sub_u32', 'v10', 'v3', 'v10')
    a('v_mov_b32', 'v11', hex(f32bits(-1e30)))

    def stage_issue(soff):
        for i in range(6):
            if i == 0: a('s_mov_b32', 's41', soff)
            else: a('s_add_u32', 's41', 's41', 8192)
            a('buffer_load_dwordx4', vr(ST + 4 * i, 4), 'v9', 's[20:23]', 's41', mods='offen')
    def stage_write(vaddr):
        for i in range(6):
            a('ds_write_b128', vaddr, vr(ST + 4 * i, 4), mods='offset:%d' % (i * 8192))

    def reads(st, ak0, ak1, av, off=0):
        a('ds_read_b128', vr(K0[st], 4), ak0, mods='offset:%d' % off)
        a('ds_read_b32', vr(K1[st]), ak1, mods='offset:%d' % off)
        a('ds_read_b128', vr(V[st], 4), av, mods='offset:%d' % off)
        a('ds_read_b128', vr(V[st] + 4, 4), av, mods='offset:%d' % (off + 672))

    def tree():
        a('v_max3_f32', vr(VTM), vr(S), vr(S + 1), vr(S + 2))
        for k in range(6):
            a('v_max3_f32', vr(VTM), vr(VTM), vr(S + 3 + 2 * k), vr(S + 4 + 2 * k))
        a('v_max_f32', vr(VTM), vr(VTM), vr(S + 15))
    def crosshalf():
        a('v_mov_b32', vr(VD), vr(VTM))
        a('v_permlane32_swap_b32', vr(VD), vr(VTM))
        a('v_max_f32', vr(VTM), vr(VTM), vr(VD))
    def mask(kind):
        for r in range(16):
            cst = 8 * (r >> 2) + (r & 3)
            if kind == 'diag': a('v_cmp_le_i32', 'vcc', cst, 'v10')
            else: a('v_cmp_gt_i32', 'vcc', cst, 'v10')
            a('v_cndmask_b32', vr(S + r), 'v11', vr(S + r), 'vcc')

    def init_max(st, kind):
        a('v_mfma_f32_32x32x16_bf16', vr(S, 16), vr(K0[st], 4), vr(Q0, 4), 0)
        a('v_mfma_f32_32x32x16_bf16', vr(S, 16), vr(K1[st], 4), vr(Q1, 4), vr(S, 16))
        if kind: mask(kind)
        tree()
        crosshalf()
        a('v_mov_b32', vr(VM), vr(VTM))
        for r in range(16):
            a('v_sub_f32', vr(BIAS + r), 0, vr(VTM))
            a('v_mov_b32', vr(O + r), 0)

    def tile(st, kind=None):
        a('v_mfma_f32_32x32x16_bf16', vr(S, 16), vr(K0[st], 4), vr(Q0, 4), vr(BIAS, 16))
        a('v_mfma_f32_32x32x16_bf16', vr(S, 16), vr(K1[st], 4), vr(Q1, 4), vr(S, 16))
        if kind: mask(kind)
        tree()
        skip = a.newlabel('k2_f')
        a('v_cmp_lt_f32', 'vcc', 's40', vr(VTM))
        a('s_cbranch_vccz', skip)
        crosshalf()
        a('v_max_f32', vr(VD), 0, vr(VTM))
        a('v_add_f32', vr(VM), vr(VM), vr(VD))
        a('v_sub_f32', vr(VT), 0, vr(VD))
        a('v_exp_f32', vr(VT), vr(VT))
        for r in range(16):
            a('v_sub_f32', vr(S + r), vr(S + r), vr(VD))
            a('v_sub_f32', vr(BIAS + r), vr(BIAS + r), vr(VD))
            a('v_mul_f32', vr(O + r), vr(O + r), vr(VT))
        a.label(skip)
        for r in range(16):
            a('v_exp_f32', vr(S + r), vr(S + r))
        for k in range(8):
            a('v_cvt_pk_bf16_f32', vr(P + k), vr(S + 2 * k), vr(S + 2 * k + 1))
        a('v_mfma_f32_32x32x16_bf16', vr(O, 16), vr(V[st], 4), vr(P, 4), vr(O, 16))
        a('v_mfma_f32_32x32x16_bf16', vr(O, 16), vr(V[st] + 4, 4), vr(P + 4, 4), vr(O, 16))

    a('s_cmp_lg_u32', 's26', 0)
    a('s_cbranch_scc1', LB)
    stage_issue('s29')
    a('s_waitcnt', 'vmcnt(0)')
    stage_write('v9')
    a('s_waitcnt', 'lgkmcnt(0)')
    a('s_barrier')
    reads(0, 'v5', 'v6', 'v7')
    a('s_waitcnt', 'lgkmcnt(0)')
    init_max(0, None)
    a('s_mov_b32', 's42', 0)
    Lc = 'k2_chunk'
    a.label(Lc)
    Lni = 'k2_noissue'
    a('s_cmp_ge_u32', 's42', 3)
    a('s_cbranch_scc1', Lni)
    a('s_add_u32', 's43', 's42', 1)
    a('s_mul_i32', 's43', 's43', 16 * REC_KV)
    a('s_add_u32', 's43', 's43', 's29')
    stage_issue('s43')
    a.label(Lni)
    a('s_and_b32', 's43', 's42', 1)
    a('s_mul_i32', 's43', 's43', K2_BUF)
    a('v_add_u32', 'v116', 's43', 'v5')
    a('v_add_u32', 'v117', 's43', 'v6')
    a('v_add_u32', 'v118', 's43', 'v7')
    reads(0, 'v116', 'v117', 'v118')
    a('s_mov_b32', 's44', 0)
    Lt = 'k2_tiles'
    a.label(Lt)
    reads(1, 'v116', 'v117', 'v118', REC_KV)
    a('s_waitcnt', 'lgkmcnt(4)')
    tile(0)
    reads(0, 'v116', 'v117', 'v118', 2 * REC_KV)
    a('s_waitcnt', 'lgkmcnt(4)')
    tile(1)
    a('v_add_u32', 'v116', 2 * REC_KV, 'v116')
    a('v_add_u32', 'v117', 2 * REC_KV, 'v117')
    a('v_add_u32', 'v118', 2 * REC_KV, 'v118')
    a('s_add_u32', 's44', 's44', 1)
    a('s_cmp_lt_u32', 's44', 8)
    a('s_cbranch_scc1', Lt)
    a('s_waitcnt', 'lgkmcnt(0)')
    a('s_cmp_ge_u32', 's42', 3)
    a('s_cbranch_scc1', Lepi)
    a('s_waitcnt', 'vmcnt(0)')
    a('s_add_u32', 's42', 's42', 1)
    a('s_and_b32', 's43', 's42', 1)
    a('s_mul_i32', 's43', 's43', K2_BUF)
    a('v_add_u32', 'v119', 's43', 'v9')
    stage_write('v119')
    a('s_waitcnt', 'lgkmcnt(0)')
    a('s_barrier')
    a('s_branch', Lc)
    a.label(LB)
    a('s_lshl_b32', 's42', 's25', 3)
    a('s_max_i32', 's42', 's42', 8)
    a('s_sub_u32', 's42', 's42', 8)
    a('s_mul_i32', 's43', 's42', REC_KV)
    a('s_add_u32', 's43', 's43', 's29')
    stage_issue('s43')
    a('s_waitcnt', 'vmcnt(0)')
    stage_write('v9')
    a('s_waitcnt', 'lgkmcnt(0)')
    a('s_barrier')
    a('s_sub_u32', 's44', 's28', 's42')
    a('s_mul_i32', 's45', 's44', REC_KV)
    a('v_add_u32', 'v116', 's45', 'v5')
    a('v_add_u32', 'v117', 's45', 'v6')
    a('v_add_u32', 'v118', 's45', 'v7')
    reads(0, 'v116', 'v117', 'v118')
    a('s_waitcnt', 'lgkmcnt(0)')
    init_max(0, 'diag')
    tile(0, 'diag')
    a('s_min_u32', 's46', 's28', 7)
    Lf = 'k2_bfull'; Lfe = 'k2_bfull_end'
    a.label(Lf)
    a('s_cmp_eq_u32', 's46', 0)
    a('s_cbranch_scc1', Lfe)
    a('v_subrev_u32', 'v116', REC_KV, 'v116')
    a('v_subrev_u32', 'v117', REC_KV, 'v117')
    a('v_subrev_u32', 'v118', REC_KV, 'v118')
    reads(0, 'v116', 'v117', 'v118')
    a('s_waitcnt', 'lgkmcnt(0)')
    tile(0)
    a('s_sub_u32', 's46', 's46', 1)
    a('s_branch', Lf)
    a.label(Lfe)
    a('s_cmp_lt_u32', 's28', 8)
    a('s_cbranch_scc1', Lepi)
    a('v_subrev_u32', 'v116', REC_KV, 'v116')
    a('v_subrev_u32', 'v117', REC_KV, 'v117')
    a('v_subrev_u32', 'v118', REC_KV, 'v118')
    reads(0, 'v116', 'v117', 'v118')
    a('s_waitcnt', 'lgkmcnt(0)')
    tile(0, 'edge')
    a.label(Lepi)
    a('v_mov_b32', vr(VD), vr(O + 8))
    a('v_mov_b32', vr(VT), vr(O + 8))
    a('v_permlane32_swap_b32', vr(VD), vr(VT))
    a('v_rcp_f32', vr(VT), vr(VT))
    for r in range(12):
        a('v_mul_f32', vr(O + r), vr(O + r), vr(VT))
    for k in range(6):
        a('v_cvt_pk_bf16_f32', vr(P + k), vr(O + 2 * k), vr(O + 2 * k + 1))
    a('s_lshl_b32', 's43', 's28', 5)
    a('v_add_u32', vr(VD), 's43', 'v3')
    a('s_movk_i32', 's44', 1280)
    a('v_mul_lo_u32', vr(VD), vr(VD), 's44')
    a('v_lshl_add_u32', vr(VD), 'v4', 3, vr(VD))
    a('s_mul_i32', 's44', 's24', 40)
    a('s_add_u32', 's44', 's44', 's31')
    a('buffer_store_dwordx2', vr(P, 2), vr(VD), 's[20:23]', 's44', mods='offen')
    a('buffer_store_dwordx2', vr(P + 2, 2), vr(VD), 's[20:23]', 's44', mods='offen offset:16')
    a('s_mov_b32', 'exec_hi', 0)
    a('buffer_store_dwordx2', vr(P + 4, 2), vr(VD), 's[20:23]', 's44', mods='offen offset:32')
    a.label(Lexit)
    a('s_endpgm')
    return name, 144

K3_XROW = 272
K3_WROW = 192
K3_XSZ = 64 * K3_XROW
K3_WSZ = 128 * K3_WROW
K3_BUF = K3_XSZ + K3_WSZ
K3_LDS = 2 * K3_BUF

def gen_k3(a):
    name = 'oproj_kernel'
    header(a, name)
    Lexit = 'k3_exit'
    a('s_cmp_ge_u32', 's2', 320)
    a('s_cbranch_scc1', Lexit)
    a('s_load_dwordx2', 's[4:5]', 's[0:1]', 16)
    a('s_load_dwordx2', 's[6:7]', 's[0:1]', 40)
    a('s_load_dwordx2', 's[8:9]', 's[0:1]', 56)
    a('s_load_dwordx2', 's[10:11]', 's[0:1]', 72)
    a('s_waitcnt', 'lgkmcnt(0)')
    srd(a, 12, 4, 640 * 640 * 2)
    srd(a, 16, 6, 640 * 640 * 2)
    srd(a, 20, 10, WS_SIZE)
    srd(a, 24, 8, 2048 * 640 * 2)
    a('s_and_b32', 's28', 's2', 31)
    a('s_lshr_b32', 's29', 's2', 5)
    a('v_lshrrev_b32', 'v1', 6, 'v0')
    a('v_readfirstlane_b32', 's30', 'v1')
    a('s_and_b32', 's31', 's30', 1)
    a('s_lshr_b32', 's32', 's30', 1)
    a('s_lshl_b32', 's33', 's28', 6)
    a('v_lshrrev_b32', 'v2', 4, 'v0')
    a('v_add_u32', 'v2', 's33', 'v2')
    a('s_movk_i32', 's34', 1280)
    a('v_mul_lo_u32', 'v2', 'v2', 's34')
    a('v_and_b32', 'v3', 15, 'v0')
    a('v_lshl_add_u32', 'v2', 'v3', 4, 'v2')
    a('v_lshrrev_b32', 'v3', 3, 'v0')
    a('v_mul_lo_u32', 'v3', 'v3', 's34')
    a('v_and_b32', 'v4', 7, 'v0')
    a('v_lshl_add_u32', 'v3', 'v4', 4, 'v3')
    a('s_lshl_b32', 's35', 's29', 7)
    a('v_add_u32', 'v3', 's35', 'v3')
    a('v_lshrrev_b32', 'v4', 4, 'v0')
    a('v_mul_u32_u24', 'v4', K3_XROW, 'v4')
    a('v_and_b32', 'v5', 15, 'v0')
    a('v_lshl_add_u32', 'v4', 'v5', 4, 'v4')
    a('v_add_u32', 'v5', K3_BUF, 'v4')
    a('v_lshrrev_b32', 'v6', 3, 'v0')
    a('v_mul_u32_u24', 'v6', K3_WROW, 'v6')
    a('v_and_b32', 'v7', 7, 'v0')
    a('v_lshl_add_u32', 'v6', 'v7', 4, 'v6')
    a('v_add_u32', 'v6', K3_XSZ, 'v6')
    a('v_add_u32', 'v7', K3_BUF, 'v6')
    a('v_and_b32', 'v12', 63, 'v0')
    a('v_and_b32', 'v13', 31, 'v12')
    a('v_lshrrev_b32', 'v14', 5, 'v12')
    a('s_lshl_b32', 's34', 's31', 5)
    a('v_add_u32', 'v8', 's34', 'v13')
    a('v_mul_u32_u24', 'v8', K3_XROW, 'v8')
    a('v_lshl_add_u32', 'v8', 'v14', 4, 'v8')
    a('v_add_u32', 'v9', K3_BUF, 'v8')
    a('v_and_b32', 'v15', 15, 'v12')
    a('v_lshrrev_b32', 'v10', 2, 'v15')
    a('v_lshl_add_u32', 'v10', 'v14', 3, 'v10')
    a('v_mul_u32_u24', 'v10', K3_WROW, 'v10')
    a('v_bfe_u32', 'v11', 'v12', 4, 1)
    a('v_lshlrev_b32', 'v11', 4, 'v11')
    a('v_and_b32', 'v15', 3, 'v15')
    a('v_lshl_add_u32', 'v11', 'v15', 2, 'v11')
    a('s_lshl_b32', 's34', 's32', 5)
    a('v_add_u32', 'v11', 's34', 'v11')
    a('v_lshl_add_u32', 'v10', 'v11', 1, 'v10')
    a('v_add_u32', 'v10', K3_XSZ, 'v10')
    a('v_add_u32', 'v11', K3_BUF, 'v10')
    ACC = (64, 80); ST = 96; FX = 16; FW = 32
    a('s_lshl_b32', 's34', 's31', 5)
    a('s_add_u32', 's34', 's34', 's33')
    a('v_add_u32', 'v48', 's34', 'v13')
    a('v_lshlrev_b32', 'v49', 2, 'v48')
    a('s_mov_b32', 's36', G_OFF)
    a('buffer_load_dword', 'v50', 'v49', 's[20:23]', 's36', mods='offen')
    for r in range(16):
        a('v_mov_b32', vr(ACC[0] + r), 0)
        a('v_mov_b32', vr(ACC[1] + r), 0)

    def issue_loads(s):
        part = s // 5; ss = s % 5
        obase = O_A if part == 0 else O_B
        wsrd = 's[12:15]' if part == 0 else 's[16:19]'
        for i in range(4):
            a('s_mov_b32', 's44', obase + i * 16 * 1280 + ss * 256)
            a('buffer_load_dwordx4', vr(ST + 4 * i, 4), 'v2', 's[20:23]', 's44', mods='offen')
        for i in range(4):
            a('s_mov_b32', 's44', (ss * 128 + i * 32) * 1280)
            a('buffer_load_dwordx4', vr(ST + 16 + 4 * i, 4), 'v3', wsrd, 's44', mods='offen')
    def write_lds(buf):
        for i in range(4):
            a('ds_write_b128', 'v%d' % (4 + buf), vr(ST + 4 * i, 4), mods='offset:%d' % (i * 16 * K3_XROW))
        for i in range(4):
            a('ds_write_b128', 'v%d' % (6 + buf), vr(ST + 16 + 4 * i, 4), mods='offset:%d' % (i * 32 * K3_WROW))
    def frag_reads(buf, ks, st):
        a('ds_read_b128', vr(FX + st * 4, 4), 'v%d' % (8 + buf), mods='offset:%d' % (ks * 32))
        for hf in range(2):
            a('ds_read_b64_tr_b16', vr(FW + st * 4 + hf * 2, 2), 'v%d' % (10 + buf),
              mods='offset:%d' % (ks * 16 * K3_WROW + hf * 4 * K3_WROW))
    issue_loads(0)
    a('s_waitcnt', 'vmcnt(0)')
    write_lds(0)
    a('s_waitcnt', 'lgkmcnt(0)')
    a('s_barrier')
    NS = 4
    for s in range(10):
        buf = s % 2
        acc = vr(ACC[s // 5], 16)
        if s < 9: issue_loads(s + 1)
        for ks in range(3): frag_reads(buf, ks, ks % NS)
        for ks in range(8):
            if ks + 3 < 8:
                frag_reads(buf, ks + 3, (ks + 3) % NS)
                a('s_waitcnt', 'lgkmcnt(9)')
            else:
                a('s_waitcnt', 'lgkmcnt(%d)' % (3 * (7 - ks)))
            a('v_mfma_f32_32x32x16_bf16', acc, vr(FW + (ks % NS) * 4, 4), vr(FX + (ks % NS) * 4, 4), acc)
        if s < 9:
            a('s_waitcnt', 'vmcnt(0)')
            write_lds(1 - buf)
            a('s_waitcnt', 'lgkmcnt(0)')
            a('s_barrier')
    a('v_sub_f32', 'v51', '1.0', 'v50')
    for r in range(16):
        a('v_mul_f32', vr(ACC[0] + r), 'v50', vr(ACC[0] + r))
        a('v_fmac_f32', vr(ACC[0] + r), 'v51', vr(ACC[1] + r))
    a('s_movk_i32', 's34', 1280)
    a('v_mul_lo_u32', 'v52', 'v48', 's34')
    a('v_lshl_add_u32', 'v52', 'v14', 3, 'v52')
    a('s_lshl_b32', 's34', 's29', 7)
    a('s_lshl_b32', 's35', 's32', 6)
    a('s_add_u32', 's34', 's34', 's35')
    for rg in range(4):
        a('v_cvt_pk_bf16_f32', vr(54 + 2 * rg), vr(ACC[0] + 4 * rg), vr(ACC[0] + 4 * rg + 1))
        a('v_cvt_pk_bf16_f32', vr(55 + 2 * rg), vr(ACC[0] + 4 * rg + 2), vr(ACC[0] + 4 * rg + 3))
        a('buffer_store_dwordx2', vr(54 + 2 * rg, 2), 'v52', 's[24:27]', 's34', mods='offen offset:%d' % (16 * rg))
    a.label(Lexit)
    a('s_endpgm')
    return name, 128

def main(out):
    a = Asm()
    hdr = '''; gated mix of full attention and sliding-window attention  (generated by gen/gen.py)
; @launch kernel=qkv_kernel grid=(%d,1,1) block=(256,1,1) lds=%d
; @launch kernel=attn_kernel grid=(512,1,1) block=(512,1,1) lds=%d
; @launch kernel=oproj_kernel grid=(320,1,1) block=(256,1,1) lds=%d
.amdgcn_target "amdgcn-amd-amdhsa--gfx950"
.text
''' % (K1_NWG + K1_GATE_WG, K1_LDS, K2_LDS, K3_LDS)
    ks = [gen_k1(a), gen_k2(a), gen_k3(a)]
    txt = hdr + a.text() + '.section .rodata,"a"\n' + ''.join(descriptor(n, v) for n, v in ks)
    open(out, 'w').write(txt)

if __name__ == '__main__':
    main(sys.argv[1] if len(sys.argv) > 1 else 'gated_mix__mha_block__sliding_block__prompt.s')
```

```python
import re

def _expand(tok):
    tok = tok.strip()
    neg = tok.startswith('-')
    if neg: tok = tok[1:]
    if tok.startswith('abs(') and tok.endswith(')'): tok = tok[4:-1]
    m = re.fullmatch(r'([vs])(\d+)', tok)
    if m: return {(m.group(1), int(m.group(2)))}
    m = re.fullmatch(r'([vs])\[(\d+):(\d+)\]', tok)
    if m: return {(m.group(1), i) for i in range(int(m.group(2)), int(m.group(3)) + 1)}
    if tok == 'vcc': return {('s', 106), ('s', 107)}
    if tok == 'exec': return {('s', 126), ('s', 127)}
    if tok == 'm0': return {('s', 124)}
    return set()

TRANS = ('v_exp_f32', 'v_log_f32', 'v_rcp_f32', 'v_rsq_f32', 'v_sqrt_f32', 'v_sin_f32', 'v_cos_f32')

class Ins:
    __slots__ = ('kind', 'w', 'r', 'op', 'passes', 'c', 'ab', 'states')

class Asm:
    def __init__(self):
        self.lines = []
        self.hist = []
        self.nlabel = 0

    def raw(self, s):
        self.lines.append(s)

    def comment(self, s):
        self.lines.append('    ; ' + s)

    def label(self, name):
        self.flush()
        self.lines.append(name + ':')
        self.hist = []

    def cbranch_keep(self, op, label):
        self.lines.append('    %s %s' % (op, label))
        x = Ins(); x.kind = 'salu'; x.w = set(); x.r = set(); x.op = op; x.states = 1
        x.passes = 0; x.c = set(); x.ab = set()
        self.hist.append(x)
        self.snap = getattr(self, 'snap', {})
        self.snap[label] = list(self.hist)

    def label_keep(self, name):
        self.flush()
        self.lines.append(name + ':')
        self.hist = self.snap.pop(name)

    def newlabel(self, base='L'):
        self.nlabel += 1
        return '%s_%d' % (base, self.nlabel)

    def _dist(self, idx):
        d = 0
        for j in range(idx + 1, len(self.hist)):
            d += self.hist[j].states
        return d

    def _need(self, new):
        need = 0
        n = len(self.hist)
        for i in range(n - 1, max(-1, n - 24), -1):
            p = self.hist[i]
            d = self._dist(i)
            if d >= 20: break
            req = 0
            if p.kind == 'valu':
                vw = {x for x in p.w if x[0] == 'v'}
                sw = {x for x in p.w if x[0] == 's'}
                if new is None:
                    req = max(req, 5 if sw else 0, 2 if vw else 0)
                else:
                    if new.kind == 'mfma' and (vw & new.r): req = max(req, 2)
                    if new.kind == 'valu' and p.op in TRANS and (vw & new.r): req = max(req, 1)
                    if new.kind == 'valu' and (sw & new.r): req = max(req, 2)
                    if new.kind == 'valu' and new.op in ('v_readlane_b32', 'v_writelane_b32') and (sw & new.r): req = max(req, 4)
                    if new.kind in ('vmem',) and (sw & new.r): req = max(req, 5)
                    if new.kind == 'salu' and (sw & new.r): req = max(req, 2)
                    if new.kind == 'valu' and new.op in ('v_readfirstlane_b32', 'v_readlane_b32') and (vw & new.r): req = max(req, 1)
                    if new.kind == 'valu' and new.op.startswith('v_permlane') and (vw & new.r): req = max(req, 2)
                    if new.kind == 'valu' and 'dpp' in new.op and (vw & new.r): req = max(req, 2)
            elif p.kind == 'mfma':
                P = p.passes
                dv = {4: 8, 8: 12}[P]
                ov = {4: 6, 8: 10}[P]
                war = {4: 3, 8: 7}[P]
                if new is None:
                    req = max(req, dv)
                else:
                    if new.kind == 'mfma':
                        if p.w & new.ab: req = max(req, dv)
                        if p.w & new.c:
                            if not (p.w == new.c and new.passes == P): req = max(req, ov)
                        if (p.w & new.w) and not (p.w == new.w):
                            req = max(req, ov)
                    elif new.kind in ('valu', 'vmem', 'ds'):
                        if p.w & (new.r | new.w): req = max(req, dv)
                        if new.kind == 'valu' and (p.c & new.w): req = max(req, war)
            elif p.kind == 'vmem' and p.op.startswith('buffer_store') and ('x4' in p.op or 'x3' in p.op):
                if new is None: req = max(req, 2)
                elif new.kind == 'valu' and (p.r & new.w): req = max(req, 2)
                elif (p.r & new.w): req = max(req, 1)
            elif p.kind == 'ds' and p.op in ('ds_write_b128',):
                if new is None: req = max(req, 1)
                elif new.kind == 'valu' and (p.r & new.w): req = max(req, 1)
            need = max(need, req - d)
        return need

    def _nop(self, k):
        while k > 0:
            c = min(k, 16)
            self.lines.append('    s_nop %d' % (c - 1))
            x = Ins(); x.kind = 'nop'; x.w = set(); x.r = set(); x.op = 's_nop'; x.states = c
            x.passes = 0; x.c = set(); x.ab = set()
            self.hist.append(x)
            k -= c

    def flush(self):
        self._nop(self._need(None))

    def __call__(self, op, *ops, mods=''):
        x = Ins(); x.op = op; x.states = 1; x.passes = 0; x.c = set(); x.ab = set()
        regs = [_expand(str(o)) for o in ops]
        allr = set().union(*regs) if regs else set()
        if op.startswith('v_mfma'):
            x.kind = 'mfma'; x.w = regs[0]; x.ab = regs[1] | regs[2]; x.c = regs[3]; x.r = x.ab | x.c
            x.passes = 8 if '32x32' in op else 4
        elif op.startswith('v_'):
            x.kind = 'valu'
            if op.startswith('v_cmp'):
                x.w = regs[0]; x.r = set().union(*regs[1:])
            elif op.startswith('v_permlane'):
                x.w = allr; x.r = allr
            elif op in ('v_fmac_f32', 'v_dot2c_f32_bf16'):
                x.w = regs[0]; x.r = allr
            else:
                x.w = regs[0]; x.r = set().union(*regs[1:]) if len(regs) > 1 else set()
            if op.startswith('v_cndmask') and len(ops) == 3:
                x.r = x.r | _expand('vcc')
        elif op.startswith('ds_'):
            x.kind = 'ds'
            if op.startswith('ds_write'): x.w = set(); x.r = allr
            else: x.w = regs[0]; x.r = set().union(*regs[1:])
        elif op.startswith('buffer_') or op.startswith('global_'):
            x.kind = 'vmem'
            if 'store' in op or ' lds' in (' ' + mods): x.w = set(); x.r = allr
            else: x.w = regs[0]; x.r = set().union(*regs[1:])
        else:
            x.kind = 'salu'
            if op.startswith('s_cmp') or op.startswith('s_cbranch') or op in ('s_branch', 's_barrier', 's_waitcnt', 's_endpgm', 's_nop', 's_setprio', 's_sleep'):
                x.w = set(); x.r = allr
            else:
                x.w = regs[0] if regs else set(); x.r = set().union(*regs[1:]) if len(regs) > 1 else set()
        if op.startswith('s_cbranch') or op == 's_branch':
            self.flush()
        else:
            self._nop(self._need(x))
        line = '    ' + op
        if ops: line += ' ' + ', '.join(str(o) for o in ops)
        if mods: line += ' ' + mods
        self.lines.append(line)
        self.hist.append(x)
        if len(self.hist) > 40: self.hist = self.hist[-40:]

    def text(self):
        return '\n'.join(self.lines) + '\n'

def vr(a, n=1):
    return 'v%d' % a if n == 1 else 'v[%d:%d]' % (a, a + n - 1)
def sr(a, n=1):
    return 's%d' % a if n == 1 else 's[%d:%d]' % (a, a + n - 1)
```

```python
import sys, os
EXP = os.environ.get('EXP', '')
sys.path.insert(0, 'gen')
from emit import Asm, vr, sr

REC_KV = 2624
HSZ_KV = 64 * REC_KV
REC_Q = 1280
HSZ_Q = 64 * REC_Q
KV_A, KV_B = 0x0, 0x600000
Q_A, Q_B = 0xC00000, 0xF00000
O_A, O_B = 0x1200000, 0x1500000
G_OFF = 0x1800000
WS_SIZE = 0x10000000
CSCALE = (20 ** -0.5) * 1.4426950408889634

def f32bits(x):
    import struct
    return struct.unpack('<I', struct.pack('<f', x))[0]

def srd(a, dst, ptr, size):
    a('s_mov_b32', sr(dst), sr(ptr))
    a('s_and_b32', sr(dst + 1), sr(ptr + 1), '0xffff')
    a('s_mov_b32', sr(dst + 2), hex(size))
    a('s_mov_b32', sr(dst + 3), '0x00020000')

def cs(a, dst, t, f):
    a('s_mov_b32', dst, f)
    a('s_cselect_b32', dst, t, dst)

class Stamps:
    def __init__(self, a, base=70, kid=0):
        self.a = a; self.n = 0; self.base = base; self.kid = kid
    def __call__(self):
        if 'stamp' in EXP:
            self.a('s_memrealtime', sr(self.base + 2 * self.n, 2)); self.n += 1
    def dump(self, wgid, wave_sreg, skip):
        a = self.a
        if 'stamp' not in EXP: return
        self()
        a('s_waitcnt', 'vmcnt(0) lgkmcnt(0)')
        a('s_mov_b64', 'exec', -1)
        a('s_cmp_lg_u32', wave_sreg, 0)
        a('s_cbranch_scc1', skip)
        a('s_getreg_b32', 's98', 'hwreg(HW_REG_HW_ID)')
        a('s_getreg_b32', 's99', 'hwreg(HW_REG_XCC_ID)')
        a('v_mov_b32', 'v4', sr(self.base))
        a('v_mov_b32', 'v5', sr(self.base + 2 * (self.n - 1)))
        a('v_mov_b32', 'v6', 's98')
        a('v_mov_b32', 'v7', 's99')
        a('s_lshl_b32', 's98', 's2', 4)
        a('s_add_u32', 's98', 's98', 0x2000000 + self.kid * 0x10000)
        a('v_mov_b32', 'v2', 0)
        a('buffer_store_dwordx4', 'v[4:7]', 'v2', 's[20:23]', 's98', mods='offen')
        a('s_cmp_lg_u32', 's2', wgid)
        a('s_cbranch_scc1', skip)
        a('s_load_dwordx2', 's[96:97]', 's[0:1]', 64)
        a('s_waitcnt', 'lgkmcnt(0)')
        srd(a, 92, 96, 256)
        for i in range(self.n):
            a('v_mov_b32', 'v1', sr(self.base + 2 * i))
            a('v_mov_b32', 'v2', 4 * i)
            a('buffer_store_dword', 'v1', 'v2', 's[92:95]', 0, mods='offen')

def header(a, name):
    a.raw('.globl %s' % name)
    a.raw('.p2align 8')
    a.raw('.type %s,@function' % name)
    a.raw('%s:' % name)
    a.hist = []

def descriptor(name, vgpr, sgpr=102):
    acc = (vgpr + 3) // 4 * 4
    return '''.p2align 6
.amdhsa_kernel %s
  .amdhsa_next_free_vgpr %d
  .amdhsa_next_free_sgpr %d
  .amdhsa_accum_offset %d
  .amdhsa_group_segment_fixed_size 0
  .amdhsa_kernarg_size 80
  .amdhsa_user_sgpr_count 2
  .amdhsa_user_sgpr_kernarg_segment_ptr 1
  .amdhsa_system_sgpr_workgroup_id_x 1
.end_amdhsa_kernel
''' % (name, vgpr, sgpr, acc)

K1_NWG = 480
K1_GATE_WG = 32
K1_XROW = 144
K1_WROW = 320
K1_XSZ = 128 * K1_XROW
K1_WSZ = 64 * K1_WROW
K1_BUF = K1_XSZ + K1_WSZ
K1_LDS = 2 * K1_BUF

def gen_k1(a):
    name = 'qkv_kernel'; a.cur = 'k1'
    header(a, name)
    Lexit = 'k1_exit'; Lgate = 'k1_gate'
    a('s_cmp_ge_u32', 's2', K1_NWG + K1_GATE_WG)
    a('s_cbranch_scc1', Lexit)
    st = Stamps(a)
    st()
    a('s_load_dwordx2', 's[4:5]', 's[0:1]', 0)
    a('s_load_dwordx2', 's[6:7]', 's[0:1]', 8)
    a('s_load_dwordx2', 's[8:9]', 's[0:1]', 32)
    a('s_load_dwordx2', 's[10:11]', 's[0:1]', 72)
    a('s_load_dwordx2', 's[36:37]', 's[0:1]', 48)
    a('s_waitcnt', 'lgkmcnt(0)')
    srd(a, 12, 4, 2048 * 640 * 2)
    srd(a, 20, 10, WS_SIZE)
    a('s_cmp_ge_u32', 's2', K1_NWG)
    a('s_cbranch_scc1', Lgate)
    a('s_and_b32', 's24', 's2', 15)
    a('s_lshr_b32', 's25', 's2', 4)
    a('s_mul_i32', 's26', 's25', 205)
    a('s_lshr_b32', 's26', 's26', 10)
    a('s_mul_i32', 's27', 's26', 5)
    a('s_sub_u32', 's27', 's25', 's27')
    a('s_lshl_b32', 's27', 's27', 7)
    a('s_cmp_ge_u32', 's26', 3)
    a('s_cselect_b32', 's6', 's8', 's6')
    a('s_cselect_b32', 's7', 's9', 's7')
    a('s_cselect_b32', 's31', 3, 0)
    a('s_sub_u32', 's31', 's26', 's31')
    srd(a, 16, 6, 640 * 1920 * 2)
    a('s_mul_i32', 's32', 's31', 640)
    a('s_add_u32', 's32', 's32', 's27')
    a('v_lshrrev_b32', 'v1', 6, 'v0')
    a('v_readfirstlane_b32', 's28', 'v1')
    a('s_and_b32', 's29', 's28', 1)
    a('s_lshr_b32', 's30', 's28', 1)
    a('s_lshl_b32', 's33', 's24', 7)
    a('v_lshrrev_b32', 'v2', 3, 'v0')
    a('v_add_u32', 'v2', 's33', 'v2')
    a('s_mov_b32', 's34', 1280)
    a('v_mul_lo_u32', 'v2', 'v2', 's34')
    a('v_and_b32', 'v3', 7, 'v0')
    a('v_lshl_add_u32', 'v2', 'v3', 4, 'v2')
    a('v_lshrrev_b32', 'v3', 4, 'v0')
    a('s_mov_b32', 's34', 3840)
    a('v_mul_lo_u32', 'v3', 'v3', 's34')
    a('v_and_b32', 'v4', 15, 'v0')
    a('v_lshl_add_u32', 'v3', 'v4', 4, 'v3')
    a('s_lshl_b32', 's34', 's32', 1)
    a('v_add_u32', 'v3', 's34', 'v3')
    a('v_lshrrev_b32', 'v4', 3, 'v0')
    a('v_mul_u32_u24', 'v4', K1_XROW, 'v4')
    a('v_and_b32', 'v5', 7, 'v0')
    a('v_lshl_add_u32', 'v4', 'v5', 4, 'v4')
    a('v_add_u32', 'v5', K1_BUF, 'v4')
    a('v_lshrrev_b32', 'v6', 4, 'v0')
    a('v_mul_u32_u24', 'v6', K1_WROW, 'v6')
    a('v_and_b32', 'v7', 15, 'v0')
    a('v_lshl_add_u32', 'v6', 'v7', 4, 'v6')
    a('v_add_u32', 'v6', K1_XSZ, 'v6')
    a('v_add_u32', 'v7', K1_BUF, 'v6')
    a('v_and_b32', 'v12', 63, 'v0')
    a('v_and_b32', 'v13', 31, 'v12')
    a('v_lshrrev_b32', 'v14', 5, 'v12')
    a('s_lshl_b32', 's34', 's29', 6)
    a('v_add_u32', 'v8', 's34', 'v13')
    a('v_mul_u32_u24', 'v8', K1_XROW, 'v8')
    a('v_lshl_add_u32', 'v8', 'v14', 4, 'v8')
    a('v_add_u32', 'v9', K1_BUF, 'v8')
    a('v_and_b32', 'v15', 15, 'v12')
    a('v_lshrrev_b32', 'v10', 2, 'v15')
    a('v_lshl_add_u32', 'v10', 'v14', 3, 'v10')
    a('v_mul_u32_u24', 'v10', K1_WROW, 'v10')
    a('v_bfe_u32', 'v11', 'v12', 4, 1)
    a('v_lshlrev_b32', 'v11', 4, 'v11')
    a('v_and_b32', 'v15', 3, 'v15')
    a('v_lshl_add_u32', 'v11', 'v15', 2, 'v11')
    a('s_lshl_b32', 's34', 's30', 6)
    a('v_add_u32', 'v11', 's34', 'v11')
    a('v_lshl_add_u32', 'v10', 'v11', 1, 'v10')
    a('v_add_u32', 'v10', K1_XSZ, 'v10')
    a('v_add_u32', 'v11', K1_BUF, 'v10')
    for i in range(4):
        a('s_mov_b32', sr(40 + i), 40960 * i)
    ACC = 64; ST0 = 128; FX = 16; FW = 32

    def issue_loads(rs):
        ST = ST0 + 32 * rs
        for i in range(4):
            a('buffer_load_dwordx4', vr(ST + 4 * i, 4), 'v2', 's[12:15]', sr(40 + i), mods='offen')
        for i in range(4):
            a('buffer_load_dwordx4', vr(ST + 16 + 4 * i, 4), 'v3', 's[16:19]', 's44', mods='offen')
            a('s_add_u32', 's44', 's44', 16 * 3840)
        for i in range(4):
            a('s_add_u32', sr(40 + i), sr(40 + i), 128)
    def write_lds(buf, rs):
        ST = ST0 + 32 * rs
        for i in range(4):
            a('ds_write_b128', 'v%d' % (4 + buf), vr(ST + 4 * i, 4), mods='offset:%d' % (i * 32 * K1_XROW))
        for i in range(4):
            a('ds_write_b128', 'v%d' % (6 + buf), vr(ST + 16 + 4 * i, 4), mods='offset:%d' % (i * 16 * K1_WROW))
    def frag_reads(buf, ks, st):
        for bi in range(2):
            a('ds_read_b128', vr(FX + st * 8 + bi * 4, 4), 'v%d' % (8 + buf), mods='offset:%d' % (bi * 32 * K1_XROW + ks * 32))
        for bj in range(2):
            for hf in range(2):
                a('ds_read_b64_tr_b16', vr(FW + st * 8 + bj * 4 + hf * 2, 2), 'v%d' % (10 + buf),
                  mods='offset:%d' % (ks * 16 * K1_WROW + bj * 64 + hf * 4 * K1_WROW))

    def mainloop(vorient, tag):
        for r in range(64):
            a('v_mov_b32', vr(ACC + r), 0)
        a('s_mov_b32', 's44', 0)
        issue_loads(0); issue_loads(1)
        a('s_waitcnt', 'vmcnt(8)')
        write_lds(0, 0)
        a('s_waitcnt', 'lgkmcnt(0)')
        a('s_barrier')
        def compute(buf):
            frag_reads(buf, 0, 0)
            for ks in range(4):
                st = ks % 2
                if ks < 3:
                    frag_reads(buf, ks + 1, 1 - st)
                    a('s_waitcnt', 'lgkmcnt(6)')
                else:
                    a('s_waitcnt', 'lgkmcnt(0)')
                for bi in range(2):
                    for bj in range(2):
                        acc = vr(ACC + (bi * 2 + bj) * 16, 16)
                        xf = vr(FX + st * 8 + bi * 4, 4); wf = vr(FW + st * 8 + bj * 4, 4)
                        if vorient: a('v_mfma_f32_32x32x16_bf16', acc, xf, wf, acc)
                        else: a('v_mfma_f32_32x32x16_bf16', acc, wf, xf, acc)
        def stage(buf, issue, last=False):
            if issue: issue_loads(buf)
            compute(buf)
            if not last:
                a('s_waitcnt', 'vmcnt(%d)' % (8 if issue else 0))
                write_lds(1 - buf, 1 - buf)
                a('s_waitcnt', 'lgkmcnt(0)')
                a('s_barrier')
        if tag == 'qk': st()
        a('s_mov_b32', 's45', 0)
        L = 'k1_loop_' + tag
        a.label(L)
        stage(0, True); stage(1, True)
        a('s_add_u32', 's45', 's45', 1)
        a('s_cmp_lt_u32', 's45', 4)
        a('s_cbranch_scc1', L)
        stage(0, False); stage(1, False, last=True)

    Lv = 'k1_vpath'
    a('s_cmp_eq_u32', 's31', 2)
    a('s_cbranch_scc1', Lv)
    mainloop(False, 'qk')
    st()
    a('s_cmp_eq_u32', 's31', 0)
    cs(a, 's45', hex(f32bits(CSCALE)), hex(f32bits(1.0)))
    for r in range(64):
        a('v_mul_f32', vr(ACC + r), 's45', vr(ACC + r))
    cs(a, 's46', HSZ_Q, HSZ_KV)
    cs(a, 's47', REC_Q, REC_KV)
    a('s_cmp_ge_u32', 's26', 3)
    cs(a, 's48', Q_B, Q_A)
    cs(a, 's49', KV_B, KV_A)
    a('s_cmp_eq_u32', 's31', 0)
    a('s_cselect_b32', 's48', 's48', 's49')
    a('s_lshl_b32', 's49', 's24', 2)
    a('s_lshl_b32', 's50', 's29', 1)
    a('s_add_u32', 's49', 's49', 's50')
    a('s_mul_i32', 's49', 's49', 's47')
    a('s_add_u32', 's48', 's48', 's49')
    a('s_add_u32', 's49', 's48', 's47')
    a('s_mov_b64', 's[52:53]', -1)
    a('s_mov_b32', 's52', 0)
    a('s_mov_b64', 's[54:55]', -1)
    a('s_mov_b32', 's55', 0)
    a('s_lshr_b32', 's50', 's27', 2)
    a('s_lshl_b32', 's51', 's30', 4)
    a('s_add_u32', 's50', 's50', 's51')
    T = 48
    for bj in range(2):
        for rg in range(4):
            for h in range(2):
                o = 60 + 3 * h
                a('s_add_u32', 's56', 's50', bj * 8 + 2 * rg + h)
                a('s_mul_i32', 's57', 's56', 205)
                a('s_lshr_b32', 's57', 's57', 10)
                a('s_mul_i32', 's58', 's57', 5)
                a('s_sub_u32', sr(o + 2), 's56', 's58')
                a('s_mul_i32', 's57', 's57', 's46')
                a('s_lshr_b32', 's58', sr(o + 2), 1)
                a('s_lshl_b32', 's58', 's58', 9)
                a('s_and_b32', 's59', sr(o + 2), 1)
                a('s_lshl_b32', 's59', 's59', 3)
                a('s_add_u32', sr(o), 's57', 's58')
                a('s_add_u32', sr(o), sr(o), 's59')
                a('s_add_u32', sr(o + 1), 's57', 1024)
            a('s_mov_b64', 's[66:67]', -1)
            a('s_cmp_eq_u32', 's62', 4)
            a('s_cselect_b64', 's[66:67]', 's[52:53]', 's[66:67]')
            a('s_cmp_eq_u32', 's65', 4)
            a('s_cselect_b64', 's[66:67]', 's[54:55]', 's[66:67]')
            a('v_mov_b32', vr(T), 's60')
            a('v_mov_b32', vr(T + 1), 's63')
            a('v_cndmask_b32', vr(T), vr(T), vr(T + 1), 's[52:53]')
            a('v_lshl_add_u32', vr(T), 'v13', 4, vr(T))
            a('v_mov_b32', vr(T + 2), 's61')
            a('v_mov_b32', vr(T + 1), 's64')
            a('v_cndmask_b32', vr(T + 2), vr(T + 2), vr(T + 1), 's[52:53]')
            a('v_lshl_add_u32', vr(T + 2), 'v13', 2, vr(T + 2))
            for bi in range(2):
                base = ACC + (bi * 2 + bj) * 16 + rg * 4
                a('v_cvt_pk_bf16_f32', vr(T + 4 + bi * 2), vr(base), vr(base + 1))
                a('v_cvt_pk_bf16_f32', vr(T + 5 + bi * 2), vr(base + 2), vr(base + 3))
            a('s_mov_b64', 'exec', 's[66:67]')
            for bi in range(2):
                a('buffer_store_dwordx2', vr(T + 4 + bi * 2, 2), vr(T), 's[20:23]', sr(48 + bi), mods='offen')
            skip = a.newlabel('k1_s')
            a('s_andn2_b64', 'exec', -1, 's[66:67]')
            a('s_cbranch_scc0', skip)
            for bi in range(2):
                a('buffer_store_dword', vr(T + 4 + bi * 2), vr(T + 2), 's[20:23]', sr(48 + bi), mods='offen')
                a('buffer_store_dword', vr(T + 5 + bi * 2), vr(T + 2), 's[20:23]', sr(48 + bi), mods='offen offset:128')
            a.label(skip)
            a('s_mov_b64', 'exec', -1)
    st.dump(0, 's28', Lexit)
    a('s_branch', Lexit)
    a.label(Lv)
    mainloop(True, 'v')
    a('s_cmp_ge_u32', 's26', 3)
    cs(a, 's48', KV_B, KV_A)
    a('s_lshl_b32', 's49', 's24', 2)
    a('s_lshl_b32', 's50', 's29', 1)
    a('s_add_u32', 's49', 's49', 's50')
    a('s_mul_i32', 's49', 's49', REC_KV)
    a('s_add_u32', 's48', 's48', 's49')
    a('s_add_u32', 's49', 's48', REC_KV)
    T = 48
    for k in range(4):
        a('v_mov_b32', vr(T + 8 + k), '0x3f803f80')
    for bj in range(2):
        a('s_lshl_b32', 's50', 's30', 6)
        a('s_add_u32', 's50', 's50', 's27')
        a('s_add_u32', 's50', 's50', bj * 32)
        a('v_add_u32', vr(T), 's50', 'v13')
        a('v_mul_u32_u24', vr(T + 1), 3277, vr(T))
        a('v_lshrrev_b32', vr(T + 1), 16, vr(T + 1))
        a('v_mul_u32_u24', vr(T + 2), 20, vr(T + 1))
        a('v_sub_u32', vr(T + 2), vr(T), vr(T + 2))
        a('s_mov_b32', 's51', HSZ_KV)
        a('v_mul_lo_u32', vr(T + 1), vr(T + 1), 's51')
        a('v_lshl_add_u32', vr(T + 1), vr(T + 2), 4, vr(T + 1))
        a('v_mul_u32_u24', vr(T + 3), 336, 'v14')
        a('v_add_u32', vr(T + 1), vr(T + 1), vr(T + 3))
        a('v_add_u32', vr(T + 1), 1280, vr(T + 1))
        a('v_cmp_eq_u32', 's[56:57]', 0, vr(T + 2))
        for bi in range(2):
            base = ACC + (bi * 2 + bj) * 16
            for c in range(2):
                for k in range(4):
                    a('v_cvt_pk_bf16_f32', vr(T + 4 + k), vr(base + c * 8 + 2 * k), vr(base + c * 8 + 2 * k + 1))
                a('buffer_store_dwordx4', vr(T + 4, 4), vr(T + 1), 's[20:23]', sr(48 + bi), mods='offen offset:%d' % (c * 672))
        skip = a.newlabel('k1_v')
        a('s_and_b64', 'exec', 's[56:57]', 's[56:57]')
        a('s_cbranch_scc0', skip)
        for bi in range(2):
            for c in range(2):
                a('buffer_store_dwordx4', vr(T + 8, 4), vr(T + 1), 's[20:23]', sr(48 + bi), mods='offen offset:%d' % (c * 672 + 320))
        a.label(skip)
        a('s_mov_b64', 'exec', -1)
    a('s_branch', Lexit)
    a.label(Lgate)
    srd(a, 16, 36, 640 * 2)
    a('s_sub_u32', 's24', 's2', K1_NWG)
    a('v_lshrrev_b32', 'v1', 2, 'v0')
    a('s_lshl_b32', 's25', 's24', 6)
    a('v_add_u32', 'v1', 's25', 'v1')
    a('v_and_b32', 'v2', 3, 'v0')
    a('v_mul_u32_u24', 'v2', 320, 'v2')
    a('s_mov_b32', 's26', 1280)
    a('v_mul_lo_u32', 'v3', 'v1', 's26')
    a('v_add_u32', 'v3', 'v3', 'v2')
    for i in range(20):
        a('buffer_load_dwordx4', vr(16 + 4 * i, 4), 'v3', 's[12:15]', 0, mods='offen offset:%d' % (16 * i))
    for i in range(20):
        a('buffer_load_dwordx4', vr(96 + 4 * i, 4), 'v2', 's[16:19]', 0, mods='offen offset:%d' % (16 * i))
    a('v_mov_b32', 'v4', 0)
    a('v_mov_b32', 'v5', 0)
    a('s_waitcnt', 'vmcnt(0)')
    for i in range(80):
        a('v_lshlrev_b32', 'v6', 16, vr(16 + i))
        a('v_lshlrev_b32', 'v7', 16, vr(96 + i))
        a('v_fmac_f32', 'v4', 'v6', 'v7')
        a('v_and_b32', 'v8', '0xffff0000', vr(16 + i))
        a('v_and_b32', 'v9', '0xffff0000', vr(96 + i))
        a('v_fmac_f32', 'v5', 'v8', 'v9')
    a('v_add_f32', 'v4', 'v4', 'v5')
    for off in ('0x041F', '0x081F'):
        a('ds_swizzle_b32', 'v5', 'v4', mods='offset:%s' % off)
        a('s_waitcnt', 'lgkmcnt(0)')
        a('v_add_f32', 'v4', 'v4', 'v5')
    a('v_mul_f32', 'v4', hex(f32bits(-1.4426950408889634)), 'v4')
    a('v_exp_f32', 'v4', 'v4')
    a('v_add_f32', 'v4', '1.0', 'v4')
    a('v_rcp_f32', 'v4', 'v4')
    a('v_lshlrev_b32', 'v5', 2, 'v1')
    a('v_and_b32', 'v6', 3, 'v0')
    a('v_cmp_eq_u32', 'vcc', 0, 'v6')
    a('s_and_b64', 'exec', 'vcc', 'vcc')
    a('s_mov_b32', 's27', G_OFF)
    a('buffer_store_dword', 'v4', 'v5', 's[20:23]', 's27', mods='offen')
    a.label(Lexit)
    a('s_endpgm')
    return name, 192

K2_BUF = 49152
K2_LDS = 3 * K2_BUF
K2_NWG = 256
TMAX = float(os.environ.get('TMAX', '32.0'))

def gen_k2(a):
    name = 'attn_kernel'; a.cur = 'k2'
    header(a, name)
    Lexit = 'k2_exit'; LB = 'k2_bpath'; Lepi = 'k2_epi'; Lmerge = 'k2_merge'
    Q0 = 16; Q1 = 20; BIAS = 24; SB = (40, 56); P = 72; O = 80; K0 = 96; K1 = 100; V = 104; ST = 112
    AK0 = 'v124'; AK1 = 'v125'; AV = 'v126'; AW = 'v127'
    BK0 = 'v10'; BK1 = 'v11'; BV = 'v8'
    VM = 12; VTM = 13; VD = 14; VT = 15; VT2 = 1
    TS = 2 * REC_KV
    nst = [0]
    def stamp():
        if 'stamp' in EXP:
            a('s_memrealtime', sr(70 + 2 * nst[0], 2)); nst[0] += 1
    a('s_cmp_ge_u32', 's2', 256 if 'noB' in EXP else K2_NWG)
    a('s_cbranch_scc1', Lexit)
    stamp()
    a('s_load_dwordx2', 's[10:11]', 's[0:1]', 72)
    a('s_waitcnt', 'lgkmcnt(0)')
    srd(a, 20, 10, WS_SIZE)
    a('s_and_b32', 's24', 's2', 31)
    a('s_lshr_b32', 's25', 's2', 5)
    a('v_lshrrev_b32', 'v1', 6, 'v0')
    a('v_readfirstlane_b32', 's27', 'v1')
    a('s_cmp_ge_u32', 's25', 8)
    a('s_cselect_b32', 's26', 1, 0)
    a('s_lshr_b32', 's33', 's27', 3)
    a('s_and_b32', 's34', 's27', 7)
    a('s_lshl_b32', 's28', 's25', 3)
    a('s_add_u32', 's28', 's28', 's34')
    a('s_sub_u32', 's35', 's25', 8)
    a('s_lshl_b32', 's35', 's35', 4)
    a('s_add_u32', 's36', 's35', 's27')
    a('s_cmp_eq_u32', 's26', 0)
    a('s_cselect_b32', 's28', 's28', 's36')
    cs(a, 's29', KV_A, KV_B)
    cs(a, 's30', Q_A, Q_B)
    cs(a, 's31', O_A, O_B)
    a('s_mul_i32', 's32', 's24', HSZ_KV)
    a('s_add_u32', 's29', 's29', 's32')
    a('s_mul_i32', 's32', 's24', HSZ_Q)
    a('s_add_u32', 's30', 's30', 's32')
    a('s_mul_i32', 's32', 's28', REC_Q)
    a('s_add_u32', 's30', 's30', 's32')
    a('v_and_b32', 'v2', 63, 'v0')
    a('v_and_b32', 'v3', 31, 'v2')
    a('v_lshrrev_b32', 'v4', 5, 'v2')
    a('v_lshlrev_b32', 'v5', 4, 'v2')
    a('v_lshlrev_b32', 'v6', 2, 'v2')
    a('buffer_load_dwordx4', vr(Q0, 4), 'v5', 's[20:23]', 's30', mods='offen')
    a('buffer_load_dword', vr(Q1), 'v6', 's[20:23]', 's30', mods='offen offset:1024')
    for k in range(1, 4):
        a('v_mov_b32', vr(Q1 + k), 0)
        a('v_mov_b32', vr(K1 + k), 0)
    a('v_add_u32', 'v6', 1024, 'v6')
    a('v_min_u32', 'v7', 20, 'v3')
    a('v_subrev_u32', 'v8', 24, 'v3')
    a('v_cmp_le_u32', 'vcc', 28, 'v3')
    a('v_cndmask_b32', 'v7', 'v7', 'v8', 'vcc')
    a('v_lshlrev_b32', 'v7', 4, 'v7')
    a('v_mul_u32_u24', 'v8', 336, 'v4')
    a('v_add_u32', 'v7', 'v7', 'v8')
    a('v_add_u32', 'v7', 1280, 'v7')
    a('v_lshlrev_b32', 'v9', 4, 'v0')
    a('s_mov_b32', 's40', hex(f32bits(TMAX)))

    def stage_issue(soff, n, r0=0):
        for i in range(n):
            if i == 0: a('s_mov_b32', 's41', soff)
            else: a('s_add_u32', 's41', 's41', 16384)
            a('buffer_load_dwordx4', vr(ST + 4 * ((r0 + i) % 3), 4), 'v9', 's[20:23]', 's41', mods='offen')
    def stage_write(vaddr, n=3, off=0):
        for i in range(n):
            a('ds_write_b128', vaddr, vr(ST + 4 * i, 4), mods='offset:%d' % (off + i * 16384))
    def readsK(ak0, ak1, off=0):
        a('ds_read_b128', vr(K0, 4), ak0, mods='offset:%d' % off)
        a('ds_read_b32', vr(K1), ak1, mods='offset:%d' % off)
    def readsV(av, off=0):
        a('ds_read_b128', vr(V, 4), av, mods='offset:%d' % off)
        a('ds_read_b128', vr(V + 4, 4), av, mods='offset:%d' % (off + 672))
    def tree_ops(S):
        ops = []
        t = [VTM, VD, VT, VT2]
        for c in range(4):
            ops.append(lambda c=c: a('v_max3_f32', vr(t[c]), vr(S + 4 * c), vr(S + 4 * c + 1), vr(S + 4 * c + 2)))
        for c in range(4):
            ops.append(lambda c=c: a('v_max_f32', vr(t[c]), vr(t[c]), vr(S + 4 * c + 3)))
        ops.append(lambda: a('v_max3_f32', vr(VTM), vr(VTM), vr(VD), vr(VT)))
        ops.append(lambda: a('v_max_f32', vr(VTM), vr(VTM), vr(VT2)))
        return ops
    def crosshalf():
        a('v_mov_b32', vr(VD), vr(VTM))
        a('v_permlane32_swap_b32', vr(VD), vr(VTM))
        a('v_max_f32', vr(VTM), vr(VTM), vr(VD))
    def mask(S, kind):
        for r in range(16):
            cst = 8 * (r >> 2) + (r & 3)
            if kind == 'diag': a('v_cmp_le_i32', 'vcc', cst, 'v10')
            else: a('v_cmp_gt_i32', 'vcc', cst, 'v10')
            a('v_cndmask_b32', vr(S + r), 'v11', vr(S + r), 'vcc')
    def qk(S, c=None):
        a('v_mfma_f32_32x32x16_bf16', vr(S, 16), vr(K0, 4), vr(Q0, 4), vr(BIAS, 16) if c is None else c)
        a('v_mfma_f32_32x32x16_bf16', vr(S, 16), vr(K1, 4), vr(Q1, 4), vr(S, 16))
    def pv():
        a('v_mfma_f32_32x32x16_bf16', vr(O, 16), vr(V, 4), vr(P, 4), vr(O, 16))
        a('v_mfma_f32_32x32x16_bf16', vr(O, 16), vr(V + 4, 4), vr(P + 4, 4), vr(O, 16))
    def rare(S):
        skip = a.newlabel('k2_f')
        a.cbranch_keep('s_cbranch_vccz', skip)
        crosshalf()
        a('v_max_f32', vr(VD), 0, vr(VTM))
        a('v_add_f32', vr(VM), vr(VM), vr(VD))
        a('v_sub_f32', vr(VT), 0, vr(VD))
        a('v_exp_f32', vr(VT), vr(VT))
        for r in range(16):
            a('v_sub_f32', vr(S + r), vr(S + r), vr(VD))
            a('v_sub_f32', vr(BIAS + r), vr(BIAS + r), vr(VD))
            a('v_mul_f32', vr(O + r), vr(O + r), vr(VT))
        a.label_keep(skip)
    def init_max(S, kind):
        qk(S, 0)
        if kind: mask(S, kind)
        for f in tree_ops(S): f()
        crosshalf()
        a('v_mov_b32', vr(VM), vr(VTM))
        for r in range(16):
            a('v_sub_f32', vr(BIAS + r), 0, vr(VTM))
            a('v_mov_b32', vr(O + r), 0)
    def check_now(S, kind=None):
        if kind: mask(S, kind)
        for f in tree_ops(S): f()
        a('v_cmp_lt_f32', 'vcc', 's40', vr(VTM))
        rare(S)
    def softmax_pv(S):
        for r in range(16):
            a('v_exp_f32', vr(S + r), vr(S + r))
        for k in range(8):
            a('v_cvt_pk_bf16_f32', vr(P + k), vr(S + 2 * k), vr(S + 2 * k + 1))
        pv()

    def pstep(cur, nxt, kread, vread, do_next, xw=0, post=None):
        Sc = SB[cur]; Sn = SB[nxt]
        ex = lambda r: a('v_exp_f32', vr(Sc + r), vr(Sc + r))
        cv = lambda k: a('v_cvt_pk_bf16_f32', vr(P + k), vr(Sc + 2 * k), vr(Sc + 2 * k + 1))
        if do_next:
            a('s_waitcnt', 'lgkmcnt(%d)' % (2 + xw))
            a('v_mfma_f32_32x32x16_bf16', vr(Sn, 16), vr(K0, 4), vr(Q0, 4), vr(BIAS, 16))
        for r in range(0, 4): ex(r)
        if do_next:
            a('v_mfma_f32_32x32x16_bf16', vr(Sn, 16), vr(K1, 4), vr(Q1, 4), vr(Sn, 16))
            if kread: readsK(*kread)
        for r in range(4, 8): ex(r)
        for k in range(4): cv(k)
        a('s_waitcnt', 'lgkmcnt(%d)' % (((2 if kread else 0) + xw) if do_next else 0))
        a('v_mfma_f32_32x32x16_bf16', vr(O, 16), vr(V, 4), vr(P, 4), vr(O, 16))
        tr = tree_ops(Sn) if do_next else []
        for i in range(8):
            ex(8 + i)
            if i < len(tr): tr[i]()
        for k in range(4, 8):
            cv(k)
            if do_next and k - 4 < 2: tr[8 + k - 4]()
        if do_next:
            a('v_cmp_lt_f32', 'vcc', 's40', vr(VTM))
        a('v_mfma_f32_32x32x16_bf16', vr(O, 16), vr(V + 4, 4), vr(P + 4, 4), vr(O, 16))
        if do_next:
            if vread: readsV(*vread)
            rare(Sn)
        if post: post()

    stage_issue('s29', 3)
    a('s_mul_i32', 's37', 's33', REC_KV)
    a('v_add_u32', AK0, 's37', 'v5'); a('v_add_u32', AK1, 's37', 'v6'); a('v_add_u32', AV, 's37', 'v7')
    a('v_add_u32', BK0, K2_BUF, AK0); a('v_add_u32', BK1, K2_BUF, AK1); a('v_add_u32', BV, K2_BUF, AV)
    a('s_waitcnt', 'vmcnt(0)')
    stage_write('v9')
    a('s_waitcnt', 'lgkmcnt(0)')
    a('s_barrier')
    stamp()
    readsK(AK0, AK1, 0)
    a('s_waitcnt', 'lgkmcnt(0)')
    init_max(SB[0], None)
    qk(SB[0])
    readsK(AK0, AK1, TS)
    readsV(AV, 0)
    check_now(SB[0])
    stamp()
    a('s_mov_b32', 's42', 0)
    a('s_mov_b32', 's43', 1)
    a('s_lshl_b32', 's35', 's25', 3)
    a('s_max_i32', 's35', 's35', 8)
    a('s_sub_u32', 's35', 's35', 8)
    a('s_mul_i32', 's36', 's35', REC_KV)
    a('s_mul_i32', 's38', 's24', HSZ_KV)
    a('s_add_u32', 's36', 's36', 's38')
    a('s_add_u32', 's36', 's36', KV_B)
    def chunk(last):
        if not last:
            a('s_add_u32', 's44', 's42', 1)
            a('s_mul_i32', 's44', 's44', 16 * REC_KV)
            a('s_add_u32', 's44', 's44', 's29')
            stage_issue('s44', 3)
        else:
            stage_issue('s36', 3)
        a('s_mul_i32', 's45', 's43', K2_BUF)
        a('v_add_u32', AW, 's45', 'v9')
        def wr():
            a('s_waitcnt', 'vmcnt(0)')
            stage_write(AW)
        for j in range(8):
            cur = j % 2
            if j == 6 and not last:
                a('s_barrier')
            fin = last and j == 7
            if j <= 5: kr = (AK0, AK1, (j + 2) * TS)
            else: kr = None if last else (BK0, BK1, (j - 6) * TS)
            if j <= 6: vrd = (AV, (j + 1) * TS)
            else: vrd = None if last else (BV, 0)
            pstep(cur, 1 - cur, kr, vrd, not fin, xw=(3 if j == 4 else 0),
                  post=(wr if j == 3 else None))
    Lc = 'k2_chunk'
    a.label(Lc)
    chunk(False)
    a('v_mov_b32', AK0, BK0); a('v_mov_b32', AK1, BK1); a('v_mov_b32', AV, BV)
    a('s_add_u32', 's42', 's42', 1)
    a('s_add_u32', 's43', 's43', 1)
    a('s_cmp_ge_u32', 's43', 3)
    a('s_cselect_b32', 's43', 0, 's43')
    a('s_mul_i32', 's45', 's43', K2_BUF)
    a('s_add_u32', 's45', 's45', 's37')
    a('v_add_u32', BK0, 's45', 'v5'); a('v_add_u32', BK1, 's45', 'v6'); a('v_add_u32', BV, 's45', 'v7')
    a('s_cmp_lt_u32', 's42', 3)
    a('s_cbranch_scc1', Lc)
    stamp()
    chunk(True)
    stamp()

    def merge_epilogue(tag, obase_sreg, lds_off):
        Lg0 = 'k2_g0_' + tag; Ldone = 'k2_md_' + tag
        a('s_barrier')
        a('s_and_b32', 's44', 's27', 7)
        a('s_mul_i32', 's44', 's44', 13 * 256)
        a('s_add_u32', 's44', 's44', lds_off)
        a('v_lshlrev_b32', vr(VD), 2, 'v2')
        a('v_add_u32', vr(VD), 's44', vr(VD))
        a('s_cmp_eq_u32', 's33', 0)
        a('s_cbranch_scc1', Lg0)
        for r in range(12):
            a('ds_write_b32', vr(VD), vr(O + r), mods='offset:%d' % (r * 256))
        a('ds_write_b32', vr(VD), vr(VM), mods='offset:%d' % (12 * 256))
        a('s_waitcnt', 'lgkmcnt(0)')
        a('s_barrier')
        a('s_branch', Ldone)
        a.label(Lg0)
        a('s_barrier')
        for r in range(12):
            a('ds_read_b32', vr(SB[0] + r), vr(VD), mods='offset:%d' % (r * 256))
        a('ds_read_b32', vr(SB[0] + 12), vr(VD), mods='offset:%d' % (12 * 256))
        a('s_waitcnt', 'lgkmcnt(0)')
        a('v_max_f32', vr(VT), vr(VM), vr(SB[0] + 12))
        a('v_sub_f32', vr(VTM), vr(VM), vr(VT))
        a('v_sub_f32', vr(VT2), vr(SB[0] + 12), vr(VT))
        a('v_exp_f32', vr(VTM), vr(VTM))
        a('v_exp_f32', vr(VT2), vr(VT2))
        for r in range(12):
            a('v_mul_f32', vr(O + r), vr(O + r), vr(VTM))
            a('v_fmac_f32', vr(O + r), vr(SB[0] + r), vr(VT2))
        a('v_mov_b32', vr(VD), vr(O + 8))
        a('v_mov_b32', vr(VT), vr(O + 8))
        a('v_permlane32_swap_b32', vr(VD), vr(VT))
        a('v_rcp_f32', vr(VT), vr(VT))
        for r in range(12):
            a('v_mul_f32', vr(O + r), vr(O + r), vr(VT))
        for k in range(6):
            a('v_cvt_pk_bf16_f32', vr(P + k), vr(O + 2 * k), vr(O + 2 * k + 1))
        a('s_lshl_b32', 's43', 's28', 5)
        a('v_add_u32', vr(VD), 's43', 'v3')
        a('s_movk_i32', 's44', 1280)
        a('v_mul_lo_u32', vr(VD), vr(VD), 's44')
        a('v_lshl_add_u32', vr(VD), 'v4', 3, vr(VD))
        a('s_mul_i32', 's44', 's24', 40)
        a('s_add_u32', 's44', 's44', obase_sreg)
        a('buffer_store_dwordx2', vr(P, 2), vr(VD), 's[20:23]', 's44', mods='offen')
        a('buffer_store_dwordx2', vr(P + 2, 2), vr(VD), 's[20:23]', 's44', mods='offen offset:16')
        a('s_mov_b32', 'exec_hi', 0)
        a('buffer_store_dwordx2', vr(P + 4, 2), vr(VD), 's[20:23]', 's44', mods='offen offset:32')
        a('s_mov_b64', 'exec', -1)
        a.label(Ldone)

    a('s_mul_i32', 's46', 's24', HSZ_Q)
    a('s_mul_i32', 's47', 's28', REC_Q)
    a('s_add_u32', 's46', 's46', 's47')
    a('s_add_u32', 's46', 's46', Q_B)
    a('buffer_load_dwordx4', vr(Q0, 4), 'v5', 's[20:23]', 's46', mods='offen')
    a('v_subrev_u32', vr(VT2), 1024, 'v6')
    a('buffer_load_dword', vr(Q1), vr(VT2), 's[20:23]', 's46', mods='offen offset:1024')
    merge_epilogue('a', O_A, 0)
    stamp()
    a('v_lshlrev_b32', 'v10', 2, 'v4')
    a('v_sub_u32', 'v10', 'v3', 'v10')
    a('v_mov_b32', 'v11', hex(f32bits(-1e30)))
    a('s_sub_u32', 's44', 's28', 's35')
    a('s_mul_i32', 's45', 's44', REC_KV)
    a('s_add_u32', 's45', 's45', K2_BUF)
    a('v_add_u32', AK0, 's45', 'v5')
    a('v_add_u32', AK1, 's45', 'v6')
    a('v_add_u32', AV, 's45', 'v7')
    a('s_waitcnt', 'vmcnt(0)')
    Lb1 = 'k2_b1'; Lbm = 'k2_bm'; Lf = 'k2_bfull'; Lfe = 'k2_bfull_end'; Lempty = 'k2_bempty'
    def down(n=1):
        a('v_subrev_u32', AK0, n * REC_KV, AK0)
        a('v_subrev_u32', AK1, n * REC_KV, AK1)
        a('v_subrev_u32', AV, n * REC_KV, AV)
    a('s_cmp_lg_u32', 's33', 0)
    a('s_cbranch_scc1', Lb1)
    readsK(AK0, AK1); readsV(AV)
    a('s_waitcnt', 'lgkmcnt(0)')
    init_max(SB[0], 'diag')
    qk(SB[0]); check_now(SB[0], 'diag'); softmax_pv(SB[0])
    a('s_min_u32', 's46', 's28', 4)
    a('s_mov_b32', 's47', 0)
    a('s_branch', Lf)
    a.label(Lb1)
    a('s_cmp_lt_u32', 's28', 5)
    a('s_cbranch_scc1', Lempty)
    down(5)
    readsK(AK0, AK1); readsV(AV)
    a('s_waitcnt', 'lgkmcnt(0)')
    init_max(SB[0], None)
    qk(SB[0]); check_now(SB[0]); softmax_pv(SB[0])
    a('s_sub_u32', 's46', 's28', 5)
    a('s_min_u32', 's46', 's46', 2)
    a('s_cmp_ge_u32', 's28', 8)
    a('s_cselect_b32', 's47', 1, 0)
    a.label(Lf)
    a('s_cmp_eq_u32', 's46', 0)
    a('s_cbranch_scc1', Lfe)
    down()
    readsK(AK0, AK1); readsV(AV)
    a('s_waitcnt', 'lgkmcnt(2)')
    qk(SB[0]); check_now(SB[0])
    a('s_waitcnt', 'lgkmcnt(0)')
    softmax_pv(SB[0])
    a('s_sub_u32', 's46', 's46', 1)
    a('s_branch', Lf)
    a.label(Lfe)
    a('s_cmp_eq_u32', 's47', 0)
    a('s_cbranch_scc1', Lbm)
    down()
    readsK(AK0, AK1); readsV(AV)
    a('s_waitcnt', 'lgkmcnt(0)')
    qk(SB[0]); check_now(SB[0], 'edge'); softmax_pv(SB[0])
    a('s_branch', Lbm)
    a.label(Lempty)
    a('v_mov_b32', vr(VM), 'v11')
    for r in range(12):
        a('v_mov_b32', vr(O + r), 0)
    a.label(Lbm)
    merge_epilogue('b', O_B, 0)
    if 'stamp' in EXP:
        stamp()
        a('s_waitcnt', 'vmcnt(0) lgkmcnt(0)')
        a('s_cmp_lg_u32', 's27', 0)
        a('s_cbranch_scc1', Lexit)
        a('v_mov_b32', 'v4', 's70')
        a('v_mov_b32', 'v5', sr(70 + 2 * (nst[0] - 1)))
        a('v_mov_b32', 'v6', 0)
        a('v_mov_b32', 'v7', 0)
        a('s_lshl_b32', 's98', 's2', 4)
        a('s_add_u32', 's98', 's98', 0x2010000)
        a('v_mov_b32', 'v2', 0)
        a('buffer_store_dwordx4', 'v[4:7]', 'v2', 's[20:23]', 's98', mods='offen')
        a('s_cmp_lg_u32', 's2', 0)
        a('s_cbranch_scc1', Lexit)
        a('s_load_dwordx2', 's[60:61]', 's[0:1]', 64)
        a('s_waitcnt', 'lgkmcnt(0)')
        srd(a, 64, 60, 256)
        for i in range(nst[0]):
            a('v_mov_b32', 'v1', sr(70 + 2 * i))
            a('v_mov_b32', 'v2', 4 * i)
            a('buffer_store_dword', 'v1', 'v2', 's[64:67]', 0, mods='offen')
    a.label(Lexit)
    a('s_endpgm')
    return name, 128

K3_XROW = 272
K3_WROW = 160
K3_XSZ = 64 * K3_XROW
K3_WSZ = 128 * K3_WROW
K3_BUF = K3_XSZ + K3_WSZ
K3_LDS = 2 * K3_BUF

def gen_k3(a):
    name = 'oproj_kernel'; a.cur = 'k3'
    header(a, name)
    Lexit = 'k3_exit'
    a('s_cmp_ge_u32', 's2', 320)
    a('s_cbranch_scc1', Lexit)
    st = Stamps(a, kid=2)
    st()
    a('s_load_dwordx2', 's[4:5]', 's[0:1]', 16)
    a('s_load_dwordx2', 's[6:7]', 's[0:1]', 40)
    a('s_load_dwordx2', 's[8:9]', 's[0:1]', 56)
    a('s_load_dwordx2', 's[10:11]', 's[0:1]', 72)
    a('s_waitcnt', 'lgkmcnt(0)')
    srd(a, 12, 4, 640 * 640 * 2)
    srd(a, 16, 6, 640 * 640 * 2)
    srd(a, 20, 10, WS_SIZE)
    srd(a, 24, 8, 2048 * 640 * 2)
    a('s_and_b32', 's28', 's2', 31)
    a('s_lshr_b32', 's29', 's2', 5)
    a('v_lshrrev_b32', 'v1', 6, 'v0')
    a('v_readfirstlane_b32', 's30', 'v1')
    a('s_and_b32', 's31', 's30', 1)
    a('s_lshr_b32', 's32', 's30', 1)
    a('s_lshl_b32', 's33', 's28', 6)
    a('v_lshrrev_b32', 'v2', 4, 'v0')
    a('v_add_u32', 'v2', 's33', 'v2')
    a('s_movk_i32', 's34', 1280)
    a('v_mul_lo_u32', 'v2', 'v2', 's34')
    a('v_and_b32', 'v3', 15, 'v0')
    a('v_lshl_add_u32', 'v2', 'v3', 4, 'v2')
    a('v_lshrrev_b32', 'v3', 3, 'v0')
    a('v_mul_lo_u32', 'v3', 'v3', 's34')
    a('v_and_b32', 'v4', 7, 'v0')
    a('v_lshl_add_u32', 'v3', 'v4', 4, 'v3')
    a('s_lshl_b32', 's35', 's29', 7)
    a('v_add_u32', 'v3', 's35', 'v3')
    a('v_lshrrev_b32', 'v4', 4, 'v0')
    a('v_mul_u32_u24', 'v4', K3_XROW, 'v4')
    a('v_and_b32', 'v5', 15, 'v0')
    a('v_lshl_add_u32', 'v4', 'v5', 4, 'v4')
    a('v_add_u32', 'v5', K3_BUF, 'v4')
    a('v_lshrrev_b32', 'v6', 3, 'v0')
    a('v_mul_u32_u24', 'v6', K3_WROW, 'v6')
    a('v_and_b32', 'v7', 7, 'v0')
    a('v_lshl_add_u32', 'v6', 'v7', 4, 'v6')
    a('v_add_u32', 'v6', K3_XSZ, 'v6')
    a('v_add_u32', 'v7', K3_BUF, 'v6')
    a('v_and_b32', 'v12', 63, 'v0')
    a('v_and_b32', 'v13', 31, 'v12')
    a('v_lshrrev_b32', 'v14', 5, 'v12')
    a('s_lshl_b32', 's34', 's31', 5)
    a('v_add_u32', 'v8', 's34', 'v13')
    a('v_mul_u32_u24', 'v8', K3_XROW, 'v8')
    a('v_lshl_add_u32', 'v8', 'v14', 4, 'v8')
    a('v_add_u32', 'v9', K3_BUF, 'v8')
    a('v_and_b32', 'v15', 15, 'v12')
    a('v_lshrrev_b32', 'v10', 2, 'v15')
    a('v_lshl_add_u32', 'v10', 'v14', 3, 'v10')
    a('v_mul_u32_u24', 'v10', K3_WROW, 'v10')
    a('v_bfe_u32', 'v11', 'v12', 4, 1)
    a('v_lshlrev_b32', 'v11', 4, 'v11')
    a('v_and_b32', 'v15', 3, 'v15')
    a('v_lshl_add_u32', 'v11', 'v15', 2, 'v11')
    a('s_lshl_b32', 's34', 's32', 5)
    a('v_add_u32', 'v11', 's34', 'v11')
    a('v_lshl_add_u32', 'v10', 'v11', 1, 'v10')
    a('v_add_u32', 'v10', K3_XSZ, 'v10')
    a('v_add_u32', 'v11', K3_BUF, 'v10')
    ACC = (64, 80); ST0 = 96; FX = 16; FW = 32
    NPF = 3
    a('s_lshl_b32', 's34', 's31', 5)
    a('s_add_u32', 's34', 's34', 's33')
    a('v_add_u32', 'v48', 's34', 'v13')
    a('v_lshlrev_b32', 'v49', 2, 'v48')
    a('s_mov_b32', 's36', G_OFF)
    a('buffer_load_dword', 'v50', 'v49', 's[20:23]', 's36', mods='offen')
    for r in range(16):
        a('v_mov_b32', vr(ACC[0] + r), 0)
        a('v_mov_b32', vr(ACC[1] + r), 0)

    def issue_loads(rs):
        ST = ST0 + 32 * rs
        a('s_cmp_ge_u32', 's46', 5)
        cs(a, 's44', O_B - 5 * 256, O_A)
        a('s_cselect_b32', 's60', 's16', 's12')
        a('s_cselect_b32', 's61', 's17', 's13')
        a('s_cselect_b32', 's47', 5 * 128 * 1280, 0)
        a('s_lshl_b32', 's45', 's46', 8)
        a('s_add_u32', 's44', 's44', 's45')
        for i in range(4):
            a('buffer_load_dwordx4', vr(ST + 4 * i, 4), 'v2', 's[20:23]', 's44', mods='offen')
            if i < 3: a('s_add_u32', 's44', 's44', 16 * 1280)
        a('s_mul_i32', 's45', 's46', 128 * 1280)
        a('s_sub_u32', 's45', 's45', 's47')
        for i in range(4):
            a('buffer_load_dwordx4', vr(ST + 16 + 4 * i, 4), 'v3', 's[60:63]', 's45', mods='offen')
            if i < 3: a('s_add_u32', 's45', 's45', 32 * 1280)
        a('s_add_u32', 's46', 's46', 1)
    def write_lds(buf, rs):
        ST = ST0 + 32 * rs
        for i in range(4):
            a('ds_write_b128', 'v%d' % (4 + buf), vr(ST + 4 * i, 4), mods='offset:%d' % (i * 16 * K3_XROW))
        for i in range(4):
            a('ds_write_b128', 'v%d' % (6 + buf), vr(ST + 16 + 4 * i, 4), mods='offset:%d' % (i * 32 * K3_WROW))
    def frag_reads(buf, ks, st):
        a('ds_read_b128', vr(FX + st * 4, 4), 'v%d' % (8 + buf), mods='offset:%d' % (ks * 32))
        for hf in range(2):
            a('ds_read_b64_tr_b16', vr(FW + st * 4 + hf * 2, 2), 'v%d' % (10 + buf),
              mods='offset:%d' % (ks * 16 * K3_WROW + hf * 4 * K3_WROW))
    a('s_mov_b32', 's62', 640 * 640 * 2)
    a('s_mov_b32', 's63', '0x00020000')
    a('s_mov_b32', 's46', 0)
    issue_loads(0); issue_loads(1)
    a('s_waitcnt', 'vmcnt(8)')
    write_lds(0, 0)
    a('s_waitcnt', 'lgkmcnt(0)')
    a('s_barrier')
    NS = 4
    acc = vr(ACC[1], 16)
    def stage(buf, issue, last=False):
        if issue: issue_loads(buf)
        for ks in range(3): frag_reads(buf, ks, ks % NS)
        for ks in range(8):
            if ks + 3 < 8:
                frag_reads(buf, ks + 3, (ks + 3) % NS)
                a('s_waitcnt', 'lgkmcnt(9)')
            else:
                a('s_waitcnt', 'lgkmcnt(%d)' % (3 * (7 - ks)))
            a('v_mfma_f32_32x32x16_bf16', acc, vr(FW + (ks % NS) * 4, 4), vr(FX + (ks % NS) * 4, 4), acc)
        if not last:
            a('s_waitcnt', 'vmcnt(%d)' % (8 if issue else 0))
            write_lds(1 - buf, 1 - buf)
            a('s_waitcnt', 'lgkmcnt(0)')
            a('s_barrier')
    st()
    a('s_mov_b32', 's48', 0)
    L = 'k3_loop'
    a.label(L)
    stage(0, True)
    sk = 'k3_noswitch'
    a('s_cmp_lg_u32', 's48', 2)
    a('s_cbranch_scc1', sk)
    for r in range(16):
        a('v_mov_b32', vr(ACC[0] + r), vr(ACC[1] + r))
    for r in range(16):
        a('v_mov_b32', vr(ACC[1] + r), 0)
    a.label(sk)
    stage(1, True)
    a('s_add_u32', 's48', 's48', 1)
    a('s_cmp_lt_u32', 's48', 4)
    a('s_cbranch_scc1', L)
    stage(0, False); stage(1, False, last=True)
    st()
    a('v_sub_f32', 'v51', '1.0', 'v50')
    for r in range(16):
        a('v_mul_f32', vr(ACC[0] + r), 'v50', vr(ACC[0] + r))
        a('v_fmac_f32', vr(ACC[0] + r), 'v51', vr(ACC[1] + r))
    a('s_movk_i32', 's34', 1280)
    a('v_mul_lo_u32', 'v52', 'v48', 's34')
    a('v_lshl_add_u32', 'v52', 'v14', 3, 'v52')
    a('s_lshl_b32', 's34', 's29', 7)
    a('s_lshl_b32', 's35', 's32', 6)
    a('s_add_u32', 's34', 's34', 's35')
    for rg in range(4):
        a('v_cvt_pk_bf16_f32', vr(54 + 2 * rg), vr(ACC[0] + 4 * rg), vr(ACC[0] + 4 * rg + 1))
        a('v_cvt_pk_bf16_f32', vr(55 + 2 * rg), vr(ACC[0] + 4 * rg + 2), vr(ACC[0] + 4 * rg + 3))
        a('buffer_store_dwordx2', vr(54 + 2 * rg, 2), 'v52', 's[24:27]', 's34', mods='offen offset:%d' % (16 * rg))
    st.dump(0, 's30', Lexit)
    a.label(Lexit)
    a('s_endpgm')
    return name, 160

class FAsm(Asm):
    cur = ''
    def __call__(self, op, *ops, mods=''):
        for tok in EXP.split(','):
            if ':' in tok:
                k, pre = tok.split(':')
                if k == self.cur and op.startswith(pre): return
        Asm.__call__(self, op, *ops, mods=mods)

def main(out):
    a = FAsm()
    hdr = '''; gated mix of full attention and sliding-window attention  (generated by gen/gen.py)
; @launch kernel=qkv_kernel grid=(%d,1,1) block=(256,1,1) lds=%d
; @launch kernel=attn_kernel grid=(256,1,1) block=(1024,1,1) lds=%d
; @launch kernel=oproj_kernel grid=(320,1,1) block=(256,1,1) lds=%d
.amdgcn_target "amdgcn-amd-amdhsa--gfx950"
.text
''' % (K1_NWG + K1_GATE_WG, K1_LDS, K2_LDS, K3_LDS)
    ks = [gen_k1(a), gen_k2(a), gen_k3(a)]
    txt = hdr + a.text() + '.section .rodata,"a"\n' + ''.join(descriptor(n, v) for n, v in ks)
    open(out, 'w').write(txt)

if __name__ == '__main__':
    main(sys.argv[1] if len(sys.argv) > 1 else 'gated_mix__mha_block__sliding_block__prompt.s')
```

```python
import sys, os
EXP = os.environ.get('EXP', '')
sys.path.insert(0, 'gen')
from emit import Asm, vr, sr

REC_KV = 2624
HSZ_KV = 64 * REC_KV
REC_Q = 1280
HSZ_Q = 64 * REC_Q
KV_A, KV_B = 0x0, 0x600000
Q_A, Q_B = 0xC00000, 0xF00000
O_A, O_B = 0x1200000, 0x1500000
G_OFF = 0x1800000
WS_SIZE = 0x10000000
CSCALE = (20 ** -0.5) * 1.4426950408889634

def f32bits(x):
    import struct
    return struct.unpack('<I', struct.pack('<f', x))[0]

def srd(a, dst, ptr, size):
    a('s_mov_b32', sr(dst), sr(ptr))
    a('s_and_b32', sr(dst + 1), sr(ptr + 1), '0xffff')
    a('s_mov_b32', sr(dst + 2), hex(size))
    a('s_mov_b32', sr(dst + 3), '0x00020000')

def cs(a, dst, t, f):
    a('s_mov_b32', dst, f)
    a('s_cselect_b32', dst, t, dst)

class Stamps:
    def __init__(self, a, base=70, kid=0):
        self.a = a; self.n = 0; self.base = base; self.kid = kid
    def __call__(self):
        if 'stamp' in EXP:
            self.a('s_memrealtime', sr(self.base + 2 * self.n, 2)); self.n += 1
    def dump(self, wgid, wave_sreg, skip):
        a = self.a
        if 'stamp' not in EXP: return
        self()
        a('s_waitcnt', 'vmcnt(0) lgkmcnt(0)')
        a('s_mov_b64', 'exec', -1)
        a('s_cmp_lg_u32', wave_sreg, 0)
        a('s_cbranch_scc1', skip)
        a('s_getreg_b32', 's98', 'hwreg(HW_REG_HW_ID)')
        a('s_getreg_b32', 's99', 'hwreg(HW_REG_XCC_ID)')
        a('v_mov_b32', 'v4', sr(self.base))
        a('v_mov_b32', 'v5', sr(self.base + 2 * (self.n - 1)))
        a('v_mov_b32', 'v6', 's98')
        a('v_mov_b32', 'v7', 's99')
        a('s_lshl_b32', 's98', 's2', 4)
        a('s_add_u32', 's98', 's98', 0x2000000 + self.kid * 0x10000)
        a('v_mov_b32', 'v2', 0)
        a('buffer_store_dwordx4', 'v[4:7]', 'v2', 's[20:23]', 's98', mods='offen')
        a('s_cmp_lg_u32', 's2', wgid)
        a('s_cbranch_scc1', skip)
        a('s_load_dwordx2', 's[96:97]', 's[0:1]', 64)
        a('s_waitcnt', 'lgkmcnt(0)')
        srd(a, 92, 96, 256)
        for i in range(self.n):
            a('v_mov_b32', 'v1', sr(self.base + 2 * i))
            a('v_mov_b32', 'v2', 4 * i)
            a('buffer_store_dword', 'v1', 'v2', 's[92:95]', 0, mods='offen')

def header(a, name):
    a.raw('.globl %s' % name)
    a.raw('.p2align 8')
    a.raw('.type %s,@function' % name)
    a.raw('%s:' % name)
    a.hist = []

def descriptor(name, vgpr, sgpr=102):
    acc = (vgpr + 3) // 4 * 4
    return '''.p2align 6
.amdhsa_kernel %s
  .amdhsa_next_free_vgpr %d
  .amdhsa_next_free_sgpr %d
  .amdhsa_accum_offset %d
  .amdhsa_group_segment_fixed_size 0
  .amdhsa_kernarg_size 80
  .amdhsa_user_sgpr_count 2
  .amdhsa_user_sgpr_kernarg_segment_ptr 1
  .amdhsa_system_sgpr_workgroup_id_x 1
.end_amdhsa_kernel
''' % (name, vgpr, sgpr, acc)

K1_NWG = 480
K1_GATE_WG = 32
K1_BUF = 16384
K1_NB = 4
K1_LDS = K1_NB * K1_BUF

def gen_k1(a):
    name = 'qkv_kernel'; a.cur = 'k1'
    header(a, name)
    Lexit = 'k1_exit'; Lgate = 'k1_gate'
    a('s_cmp_ge_u32', 's2', K1_NWG + K1_GATE_WG)
    a('s_cbranch_scc1', Lexit)
    st = Stamps(a)
    st()
    a('s_load_dwordx2', 's[4:5]', 's[0:1]', 0)
    a('s_load_dwordx2', 's[6:7]', 's[0:1]', 8)
    a('s_load_dwordx2', 's[8:9]', 's[0:1]', 32)
    a('s_load_dwordx2', 's[10:11]', 's[0:1]', 72)
    a('s_load_dwordx2', 's[36:37]', 's[0:1]', 48)
    a('s_waitcnt', 'lgkmcnt(0)')
    srd(a, 12, 4, 2048 * 640 * 2)
    srd(a, 20, 10, WS_SIZE)
    a('s_cmp_ge_u32', 's2', K1_NWG)
    a('s_cbranch_scc1', Lgate)
    a('s_and_b32', 's24', 's2', 7)
    a('s_lshr_b32', 's25', 's2', 3)
    a('s_lshr_b32', 's26', 's24', 1)
    a('s_mul_i32', 's26', 's26', 60)
    a('s_add_u32', 's26', 's26', 's25')
    a('s_and_b32', 's24', 's24', 1)
    a('s_lshl_b32', 's24', 's24', 3)
    a('s_and_b32', 's27', 's26', 7)
    a('s_add_u32', 's24', 's24', 's27')
    a('s_lshr_b32', 's25', 's26', 3)
    a('s_mul_i32', 's26', 's25', 205)
    a('s_lshr_b32', 's26', 's26', 10)
    a('s_mul_i32', 's27', 's26', 5)
    a('s_sub_u32', 's27', 's25', 's27')
    a('s_lshl_b32', 's27', 's27', 7)
    a('s_cmp_ge_u32', 's26', 3)
    a('s_cselect_b32', 's6', 's8', 's6')
    a('s_cselect_b32', 's7', 's9', 's7')
    a('s_cselect_b32', 's31', 3, 0)
    a('s_sub_u32', 's31', 's26', 's31')
    srd(a, 16, 6, 640 * 1920 * 2)
    a('s_mul_i32', 's32', 's31', 640)
    a('s_add_u32', 's32', 's32', 's27')
    a('v_lshrrev_b32', 'v1', 6, 'v0')
    a('v_readfirstlane_b32', 's28', 'v1')
    a('s_and_b32', 's29', 's28', 1)
    a('s_lshr_b32', 's30', 's28', 1)
    a('v_and_b32', 'v12', 63, 'v0')
    a('v_and_b32', 'v13', 31, 'v12')
    a('v_lshrrev_b32', 'v14', 5, 'v12')
    a('v_lshrrev_b32', 'v4', 4, 'v12')
    a('v_lshrrev_b32', 'v2', 2, 'v12')
    a('s_movk_i32', 's34', 1280)
    a('v_mul_lo_u32', 'v2', 'v2', 's34')
    a('v_and_b32', 'v3', 3, 'v12')
    a('v_xor_b32', 'v3', 'v3', 'v4')
    a('v_lshl_add_u32', 'v2', 'v3', 4, 'v2')
    a('s_movk_i32', 's34', 3840)
    a('v_mul_lo_u32', 'v3', 'v4', 's34')
    a('v_and_b32', 'v5', 15, 'v12')
    a('v_lshlrev_b32', 'v6', 2, 'v4')
    a('v_xor_b32', 'v5', 'v5', 'v6')
    a('v_lshl_add_u32', 'v3', 'v5', 4, 'v3')
    a('s_lshl_b32', 's34', 's32', 1)
    a('v_add_u32', 'v3', 's34', 'v3')
    a('s_lshl_b32', 's33', 's24', 7)
    a('s_lshl_b32', 's34', 's28', 5)
    a('s_add_u32', 's34', 's34', 's33')
    a('s_mul_i32', 's40', 's34', 1280)
    a('s_add_u32', 's41', 's40', 16 * 1280)
    a('s_lshl_b32', 's34', 's28', 3)
    a('s_mul_i32', 's42', 's34', 3840)
    a('s_add_u32', 's43', 's42', 4 * 3840)
    a('s_lshl_b32', 's46', 's28', 11)
    a('s_lshl_b32', 's34', 's29', 6)
    a('v_add_u32', 'v8', 's34', 'v13')
    a('v_bfe_u32', 'v9', 'v8', 2, 2)
    a('v_xor_b32', 'v9', 'v9', 'v14')
    a('v_lshlrev_b32', 'v8', 6, 'v8')
    a('v_lshl_add_u32', 'v10', 'v9', 4, 'v8')
    a('v_xor_b32', 'v9', 2, 'v9')
    a('v_lshl_add_u32', 'v11', 'v9', 4, 'v8')
    a('v_mov_b32', 'v8', 'v10'); a('v_mov_b32', 'v9', 'v11')
    a('v_and_b32', 'v15', 15, 'v12')
    a('v_lshrrev_b32', 'v10', 2, 'v15')
    a('v_lshlrev_b32', 'v5', 6, 'v10')
    a('v_lshl_add_u32', 'v10', 'v14', 3, 'v10')
    a('v_lshlrev_b32', 'v10', 8, 'v10')
    a('v_bfe_u32', 'v11', 'v12', 4, 1)
    a('v_lshlrev_b32', 'v11', 5, 'v11')
    a('v_and_b32', 'v15', 3, 'v15')
    a('v_lshl_add_u32', 'v11', 'v15', 3, 'v11')
    a('s_lshl_b32', 's34', 's30', 7)
    a('v_add_u32', 'v11', 's34', 'v11')
    a('v_xor_b32', 'v6', 'v11', 'v5')
    a('v_add_u32', 'v6', 'v6', 'v10')
    a('v_add_u32', 'v6', 8192, 'v6')
    a('v_add_u32', 'v11', 64, 'v11')
    a('v_xor_b32', 'v7', 'v11', 'v5')
    a('v_add_u32', 'v7', 'v7', 'v10')
    a('v_add_u32', 'v7', 8192, 'v7')
    ACC = 64; FX = 16; FW = 32

    def issue_dma(buf):
        base = buf * K1_BUF
        for j in range(2):
            a('s_add_u32', 'm0', 's46', base + j * 1024)
            a('s_nop', 0)
            a('buffer_load_dwordx4', 'v2', 's[12:15]', sr(40 + j), mods='offen lds')
        for j in range(2):
            a('s_add_u32', 'm0', 's46', base + 8192 + j * 1024)
            a('s_nop', 0)
            a('buffer_load_dwordx4', 'v3', 's[16:19]', sr(42 + j), mods='offen lds')
        for j in range(2):
            a('s_add_u32', sr(40 + j), sr(40 + j), 64)
            a('s_add_u32', sr(42 + j), sr(42 + j), 32 * 3840)
    def frag_reads(buf, fs):
        base = buf * K1_BUF
        F = FR[fs]
        for ks in range(2):
            for bi in range(2):
                a('ds_read_b128', vr(F + ks * 16 + bi * 4, 4), 'v%d' % (8 + ks), mods='offset:%d' % (base + bi * 2048))
            for bj in range(2):
                for hf in range(2):
                    a('ds_read_b64_tr_b16', vr(F + ks * 16 + 8 + bj * 4 + hf * 2, 2), 'v%d' % (6 + bj),
                      mods='offset:%d' % (base + ks * 4096 + hf * 1024))
    FR = (128, 160)

    def mainloop(vorient, tag):
        for r in range(64):
            a('v_mov_b32', vr(ACC + r), 0)
        for b in range(3): issue_dma(b)
        a('s_waitcnt', 'vmcnt(4)')
        a('s_barrier')
        frag_reads(0, 0)
        def stage(buf):
            fs = buf % 2
            issue_dma((buf + 3) % 4)
            a('s_waitcnt', 'lgkmcnt(0)')
            frag_reads((buf + 1) % 4, 1 - fs)
            F = FR[fs]
            for ks in range(2):
                for bi in range(2):
                    for bj in range(2):
                        acc = vr(ACC + (bi * 2 + bj) * 16, 16)
                        xf = vr(F + ks * 16 + bi * 4, 4); wf = vr(F + ks * 16 + 8 + bj * 4, 4)
                        if vorient: a('v_mfma_f32_32x32x16_bf16', acc, xf, wf, acc)
                        else: a('v_mfma_f32_32x32x16_bf16', acc, wf, xf, acc)
            a('s_waitcnt', 'vmcnt(4)')
            a('s_barrier')
        if tag == 'qk': st()
        a('s_mov_b32', 's45', 0)
        L = 'k1_loop_' + tag
        a.label(L)
        for b in range(4): stage(b)
        a('s_add_u32', 's45', 's45', 1)
        a('s_cmp_lt_u32', 's45', 5)
        a('s_cbranch_scc1', L)
        a('s_waitcnt', 'vmcnt(0) lgkmcnt(0)')

    Lv = 'k1_vpath'
    a('s_cmp_eq_u32', 's31', 2)
    a('s_cbranch_scc1', Lv)
    mainloop(False, 'qk')
    st()
    a('s_cmp_eq_u32', 's31', 0)
    cs(a, 's45', hex(f32bits(CSCALE)), hex(f32bits(1.0)))
    for r in range(64):
        a('v_mul_f32', vr(ACC + r), 's45', vr(ACC + r))
    cs(a, 's46', HSZ_Q, HSZ_KV)
    cs(a, 's47', REC_Q, REC_KV)
    a('s_cmp_ge_u32', 's26', 3)
    cs(a, 's48', Q_B, Q_A)
    cs(a, 's49', KV_B, KV_A)
    a('s_cmp_eq_u32', 's31', 0)
    a('s_cselect_b32', 's48', 's48', 's49')
    a('s_lshl_b32', 's49', 's24', 2)
    a('s_lshl_b32', 's50', 's29', 1)
    a('s_add_u32', 's49', 's49', 's50')
    a('s_mul_i32', 's49', 's49', 's47')
    a('s_add_u32', 's48', 's48', 's49')
    a('s_add_u32', 's49', 's48', 's47')
    a('s_mov_b64', 's[52:53]', -1)
    a('s_mov_b32', 's52', 0)
    a('s_mov_b64', 's[54:55]', -1)
    a('s_mov_b32', 's55', 0)
    a('s_lshr_b32', 's50', 's27', 2)
    a('s_lshl_b32', 's51', 's30', 4)
    a('s_add_u32', 's50', 's50', 's51')
    T = 48
    for bj in range(2):
        for rg in range(4):
            for h in range(2):
                o = 60 + 3 * h
                a('s_add_u32', 's56', 's50', bj * 8 + 2 * rg + h)
                a('s_mul_i32', 's57', 's56', 205)
                a('s_lshr_b32', 's57', 's57', 10)
                a('s_mul_i32', 's58', 's57', 5)
                a('s_sub_u32', sr(o + 2), 's56', 's58')
                a('s_mul_i32', 's57', 's57', 's46')
                a('s_lshr_b32', 's58', sr(o + 2), 1)
                a('s_lshl_b32', 's58', 's58', 9)
                a('s_and_b32', 's59', sr(o + 2), 1)
                a('s_lshl_b32', 's59', 's59', 3)
                a('s_add_u32', sr(o), 's57', 's58')
                a('s_add_u32', sr(o), sr(o), 's59')
                a('s_add_u32', sr(o + 1), 's57', 1024)
            a('s_mov_b64', 's[66:67]', -1)
            a('s_cmp_eq_u32', 's62', 4)
            a('s_cselect_b64', 's[66:67]', 's[52:53]', 's[66:67]')
            a('s_cmp_eq_u32', 's65', 4)
            a('s_cselect_b64', 's[66:67]', 's[54:55]', 's[66:67]')
            a('v_mov_b32', vr(T), 's60')
            a('v_mov_b32', vr(T + 1), 's63')
            a('v_cndmask_b32', vr(T), vr(T), vr(T + 1), 's[52:53]')
            a('v_lshl_add_u32', vr(T), 'v13', 4, vr(T))
            a('v_mov_b32', vr(T + 2), 's61')
            a('v_mov_b32', vr(T + 1), 's64')
            a('v_cndmask_b32', vr(T + 2), vr(T + 2), vr(T + 1), 's[52:53]')
            a('v_lshl_add_u32', vr(T + 2), 'v13', 2, vr(T + 2))
            for bi in range(2):
                base = ACC + (bi * 2 + bj) * 16 + rg * 4
                a('v_cvt_pk_bf16_f32', vr(T + 4 + bi * 2), vr(base), vr(base + 1))
                a('v_cvt_pk_bf16_f32', vr(T + 5 + bi * 2), vr(base + 2), vr(base + 3))
            a('s_mov_b64', 'exec', 's[66:67]')
            for bi in range(2):
                a('buffer_store_dwordx2', vr(T + 4 + bi * 2, 2), vr(T), 's[20:23]', sr(48 + bi), mods='offen')
            skip = a.newlabel('k1_s')
            a('s_andn2_b64', 'exec', -1, 's[66:67]')
            a('s_cbranch_scc0', skip)
            for bi in range(2):
                a('buffer_store_dword', vr(T + 4 + bi * 2), vr(T + 2), 's[20:23]', sr(48 + bi), mods='offen')
                a('buffer_store_dword', vr(T + 5 + bi * 2), vr(T + 2), 's[20:23]', sr(48 + bi), mods='offen offset:128')
            a.label(skip)
            a('s_mov_b64', 'exec', -1)
    st.dump(0, 's28', Lexit)
    a('s_branch', Lexit)
    a.label(Lv)
    mainloop(True, 'v')
    a('s_cmp_ge_u32', 's26', 3)
    cs(a, 's48', KV_B, KV_A)
    a('s_lshl_b32', 's49', 's24', 2)
    a('s_lshl_b32', 's50', 's29', 1)
    a('s_add_u32', 's49', 's49', 's50')
    a('s_mul_i32', 's49', 's49', REC_KV)
    a('s_add_u32', 's48', 's48', 's49')
    a('s_add_u32', 's49', 's48', REC_KV)
    T = 48
    for k in range(4):
        a('v_mov_b32', vr(T + 8 + k), '0x3f803f80')
    for bj in range(2):
        a('s_lshl_b32', 's50', 's30', 6)
        a('s_add_u32', 's50', 's50', 's27')
        a('s_add_u32', 's50', 's50', bj * 32)
        a('v_add_u32', vr(T), 's50', 'v13')
        a('v_mul_u32_u24', vr(T + 1), 3277, vr(T))
        a('v_lshrrev_b32', vr(T + 1), 16, vr(T + 1))
        a('v_mul_u32_u24', vr(T + 2), 20, vr(T + 1))
        a('v_sub_u32', vr(T + 2), vr(T), vr(T + 2))
        a('s_mov_b32', 's51', HSZ_KV)
        a('v_mul_lo_u32', vr(T + 1), vr(T + 1), 's51')
        a('v_lshl_add_u32', vr(T + 1), vr(T + 2), 4, vr(T + 1))
        a('v_mul_u32_u24', vr(T + 3), 336, 'v14')
        a('v_add_u32', vr(T + 1), vr(T + 1), vr(T + 3))
        a('v_add_u32', vr(T + 1), 1280, vr(T + 1))
        a('v_cmp_eq_u32', 's[56:57]', 0, vr(T + 2))
        for bi in range(2):
            base = ACC + (bi * 2 + bj) * 16
            for c in range(2):
                for k in range(4):
                    a('v_cvt_pk_bf16_f32', vr(T + 4 + k), vr(base + c * 8 + 2 * k), vr(base + c * 8 + 2 * k + 1))
                a('buffer_store_dwordx4', vr(T + 4, 4), vr(T + 1), 's[20:23]', sr(48 + bi), mods='offen offset:%d' % (c * 672))
        skip = a.newlabel('k1_v')
        a('s_and_b64', 'exec', 's[56:57]', 's[56:57]')
        a('s_cbranch_scc0', skip)
        for bi in range(2):
            for c in range(2):
                a('buffer_store_dwordx4', vr(T + 8, 4), vr(T + 1), 's[20:23]', sr(48 + bi), mods='offen offset:%d' % (c * 672 + 320))
        a.label(skip)
        a('s_mov_b64', 'exec', -1)
    st.n = 3
    st.dump(9999, 's28', Lexit)
    a('s_branch', Lexit)
    a.label(Lgate)
    srd(a, 16, 36, 640 * 2)
    a('s_sub_u32', 's24', 's2', K1_NWG)
    a('v_lshrrev_b32', 'v1', 2, 'v0')
    a('s_lshl_b32', 's25', 's24', 6)
    a('v_add_u32', 'v1', 's25', 'v1')
    a('v_and_b32', 'v2', 3, 'v0')
    a('v_mul_u32_u24', 'v2', 320, 'v2')
    a('s_mov_b32', 's26', 1280)
    a('v_mul_lo_u32', 'v3', 'v1', 's26')
    a('v_add_u32', 'v3', 'v3', 'v2')
    for i in range(20):
        a('buffer_load_dwordx4', vr(16 + 4 * i, 4), 'v3', 's[12:15]', 0, mods='offen offset:%d' % (16 * i))
    for i in range(20):
        a('buffer_load_dwordx4', vr(96 + 4 * i, 4), 'v2', 's[16:19]', 0, mods='offen offset:%d' % (16 * i))
    a('v_mov_b32', 'v4', 0)
    a('v_mov_b32', 'v5', 0)
    a('s_waitcnt', 'vmcnt(0)')
    for i in range(80):
        a('v_lshlrev_b32', 'v6', 16, vr(16 + i))
        a('v_lshlrev_b32', 'v7', 16, vr(96 + i))
        a('v_fmac_f32', 'v4', 'v6', 'v7')
        a('v_and_b32', 'v8', '0xffff0000', vr(16 + i))
        a('v_and_b32', 'v9', '0xffff0000', vr(96 + i))
        a('v_fmac_f32', 'v5', 'v8', 'v9')
    a('v_add_f32', 'v4', 'v4', 'v5')
    for off in ('0x041F', '0x081F'):
        a('ds_swizzle_b32', 'v5', 'v4', mods='offset:%s' % off)
        a('s_waitcnt', 'lgkmcnt(0)')
        a('v_add_f32', 'v4', 'v4', 'v5')
    a('v_mul_f32', 'v4', hex(f32bits(-1.4426950408889634)), 'v4')
    a('v_exp_f32', 'v4', 'v4')
    a('v_add_f32', 'v4', '1.0', 'v4')
    a('v_rcp_f32', 'v4', 'v4')
    a('v_lshlrev_b32', 'v5', 2, 'v1')
    a('v_and_b32', 'v6', 3, 'v0')
    a('v_cmp_eq_u32', 'vcc', 0, 'v6')
    a('s_and_b64', 'exec', 'vcc', 'vcc')
    a('s_mov_b32', 's27', G_OFF)
    a('buffer_store_dword', 'v4', 'v5', 's[20:23]', 's27', mods='offen')
    a.label(Lexit)
    a('s_endpgm')
    return name, 192

K2_BUF = 49152
K2_LDS = 3 * K2_BUF
K2_NWG = 256
TMAX = float(os.environ.get('TMAX', '64.0'))

def gen_k2(a):
    name = 'attn_kernel'; a.cur = 'k2'
    header(a, name)
    Lexit = 'k2_exit'; LB = 'k2_bpath'; Lepi = 'k2_epi'; Lmerge = 'k2_merge'
    Q0 = 16; Q1 = 20; BIAS = 24; SB = (40, 56); P = 72; O = 80; K0 = 96; K1 = 100; V = 104; ST = 112
    AK0 = 'v124'; AK1 = 'v125'; AV = 'v126'; AW = 'v127'
    BK0 = 'v10'; BK1 = 'v11'; BV = 'v8'
    VM = 12; VTM = 13; VD = 14; VT = 15; VT2 = 1
    TS = 2 * REC_KV
    nst = [0]
    def stamp():
        if 'stamp' in EXP:
            a('s_memrealtime', sr(70 + 2 * nst[0], 2)); nst[0] += 1
    a('s_cmp_ge_u32', 's2', 256 if 'noB' in EXP else K2_NWG)
    a('s_cbranch_scc1', Lexit)
    stamp()
    a('s_load_dwordx2', 's[10:11]', 's[0:1]', 72)
    a('s_waitcnt', 'lgkmcnt(0)')
    srd(a, 20, 10, WS_SIZE)
    a('s_and_b32', 's24', 's2', 31)
    a('s_lshr_b32', 's25', 's2', 5)
    a('v_lshrrev_b32', 'v1', 6, 'v0')
    a('v_readfirstlane_b32', 's27', 'v1')
    a('s_cmp_ge_u32', 's25', 8)
    a('s_cselect_b32', 's26', 1, 0)
    a('s_lshr_b32', 's33', 's27', 3)
    a('s_and_b32', 's34', 's27', 7)
    a('s_lshl_b32', 's28', 's25', 3)
    a('s_add_u32', 's28', 's28', 's34')
    a('s_sub_u32', 's35', 's25', 8)
    a('s_lshl_b32', 's35', 's35', 4)
    a('s_add_u32', 's36', 's35', 's27')
    a('s_cmp_eq_u32', 's26', 0)
    a('s_cselect_b32', 's28', 's28', 's36')
    cs(a, 's29', KV_A, KV_B)
    cs(a, 's30', Q_A, Q_B)
    cs(a, 's31', O_A, O_B)
    a('s_mul_i32', 's32', 's24', HSZ_KV)
    a('s_add_u32', 's29', 's29', 's32')
    a('s_mul_i32', 's32', 's24', HSZ_Q)
    a('s_add_u32', 's30', 's30', 's32')
    a('s_mul_i32', 's32', 's28', REC_Q)
    a('s_add_u32', 's30', 's30', 's32')
    a('v_and_b32', 'v2', 63, 'v0')
    a('v_and_b32', 'v3', 31, 'v2')
    a('v_lshrrev_b32', 'v4', 5, 'v2')
    a('v_lshlrev_b32', 'v5', 4, 'v2')
    a('v_lshlrev_b32', 'v6', 2, 'v2')
    a('buffer_load_dwordx4', vr(Q0, 4), 'v5', 's[20:23]', 's30', mods='offen')
    a('buffer_load_dword', vr(Q1), 'v6', 's[20:23]', 's30', mods='offen offset:1024')
    for k in range(1, 4):
        a('v_mov_b32', vr(Q1 + k), 0)
        a('v_mov_b32', vr(K1 + k), 0)
    a('v_add_u32', 'v6', 1024, 'v6')
    a('v_min_u32', 'v7', 20, 'v3')
    a('v_subrev_u32', 'v8', 24, 'v3')
    a('v_cmp_le_u32', 'vcc', 28, 'v3')
    a('v_cndmask_b32', 'v7', 'v7', 'v8', 'vcc')
    a('v_lshlrev_b32', 'v7', 4, 'v7')
    a('v_mul_u32_u24', 'v8', 336, 'v4')
    a('v_add_u32', 'v7', 'v7', 'v8')
    a('v_add_u32', 'v7', 1280, 'v7')
    a('v_lshlrev_b32', 'v9', 4, 'v0')
    a('s_mov_b32', 's40', hex(f32bits(TMAX)))

    def stage_issue(soff, n, r0=0):
        for i in range(n):
            if i == 0: a('s_mov_b32', 's41', soff)
            else: a('s_add_u32', 's41', 's41', 16384)
            a('buffer_load_dwordx4', vr(ST + 4 * ((r0 + i) % 3), 4), 'v9', 's[20:23]', 's41', mods='offen')
    def stage_write(vaddr, n=3, off=0):
        for i in range(n):
            a('ds_write_b128', vaddr, vr(ST + 4 * i, 4), mods='offset:%d' % (off + i * 16384))
    def readsK(ak0, ak1, off=0):
        a('ds_read_b128', vr(K0, 4), ak0, mods='offset:%d' % off)
        a('ds_read_b32', vr(K1), ak1, mods='offset:%d' % off)
    def readsV(av, off=0):
        a('ds_read_b128', vr(V, 4), av, mods='offset:%d' % off)
        a('ds_read_b128', vr(V + 4, 4), av, mods='offset:%d' % (off + 672))
    def tree_ops(S):
        m3 = lambda d, x, y, z: (lambda: a('v_max3_f32', vr(d), vr(x), vr(y), vr(z)))
        T5 = 8
        ops = [m3(VTM, S, S + 1, S + 2), m3(VD, S + 3, S + 4, S + 5), m3(VT, S + 6, S + 7, S + 8),
               m3(VT2, S + 9, S + 10, S + 11),
               m3(VTM, VTM, S + 12, S + 13), m3(VD, VD, S + 14, S + 15),
               m3(VT, VT, VT2, VTM),
               (lambda: a('v_max_f32', vr(VTM), vr(VT), vr(VD)))]
        return ops
    def crosshalf():
        a('v_mov_b32', vr(VD), vr(VTM))
        a('v_permlane32_swap_b32', vr(VD), vr(VTM))
        a('v_max_f32', vr(VTM), vr(VTM), vr(VD))
    def mask(S, kind):
        for r in range(16):
            cst = 8 * (r >> 2) + (r & 3)
            if kind == 'diag': a('v_cmp_le_i32', 'vcc', cst, 'v10')
            else: a('v_cmp_gt_i32', 'vcc', cst, 'v10')
            a('v_cndmask_b32', vr(S + r), 'v11', vr(S + r), 'vcc')
    def qk(S, c=None):
        a('v_mfma_f32_32x32x16_bf16', vr(S, 16), vr(K0, 4), vr(Q0, 4), vr(BIAS, 16) if c is None else c)
        a('v_mfma_f32_32x32x16_bf16', vr(S, 16), vr(K1, 4), vr(Q1, 4), vr(S, 16))
    def pv():
        a('v_mfma_f32_32x32x16_bf16', vr(O, 16), vr(V, 4), vr(P, 4), vr(O, 16))
        a('v_mfma_f32_32x32x16_bf16', vr(O, 16), vr(V + 4, 4), vr(P + 4, 4), vr(O, 16))
    def rare(S):
        skip = a.newlabel('k2_f')
        a.cbranch_keep('s_cbranch_vccz', skip)
        crosshalf()
        a('v_max_f32', vr(VD), 0, vr(VTM))
        a('v_add_f32', vr(VM), vr(VM), vr(VD))
        a('v_sub_f32', vr(VT), 0, vr(VD))
        a('v_exp_f32', vr(VT), vr(VT))
        for r in range(16):
            a('v_sub_f32', vr(S + r), vr(S + r), vr(VD))
            a('v_sub_f32', vr(BIAS + r), vr(BIAS + r), vr(VD))
            a('v_mul_f32', vr(O + r), vr(O + r), vr(VT))
        a.label_keep(skip)
    def init_max(S, kind):
        qk(S, 0)
        if kind: mask(S, kind)
        for f in tree_ops(S): f()
        crosshalf()
        a('v_mov_b32', vr(VM), vr(VTM))
        for r in range(16):
            a('v_sub_f32', vr(BIAS + r), 0, vr(VTM))
            a('v_mov_b32', vr(O + r), 0)
    def check_now(S, kind=None):
        if kind: mask(S, kind)
        for f in tree_ops(S): f()
        a('v_cmp_lt_f32', 'vcc', 's40', vr(VTM))
        rare(S)
    def softmax_pv(S):
        for r in range(16):
            a('v_exp_f32', vr(S + r), vr(S + r))
        for k in range(8):
            a('v_cvt_pk_bf16_f32', vr(P + k), vr(S + 2 * k), vr(S + 2 * k + 1))
        pv()

    def pstep(cur, nxt, kread, vread, do_next, xw=0, post=None):
        Sc = SB[cur]; Sn = SB[nxt]
        ex = lambda r: a('v_exp_f32', vr(Sc + r), vr(Sc + r))
        cv = lambda k: a('v_cvt_pk_bf16_f32', vr(P + k), vr(Sc + 2 * k), vr(Sc + 2 * k + 1))
        if do_next:
            a('s_waitcnt', 'lgkmcnt(%d)' % (2 + xw))
            a('v_mfma_f32_32x32x16_bf16', vr(Sn, 16), vr(K0, 4), vr(Q0, 4), vr(BIAS, 16))
        for r in range(0, 4): ex(r)
        if do_next:
            a('v_mfma_f32_32x32x16_bf16', vr(Sn, 16), vr(K1, 4), vr(Q1, 4), vr(Sn, 16))
            if kread: readsK(*kread)
        for r in range(4, 8): ex(r)
        for k in range(4): cv(k)
        a('s_waitcnt', 'lgkmcnt(%d)' % (((2 if kread else 0) + xw) if do_next else 0))
        a('v_mfma_f32_32x32x16_bf16', vr(O, 16), vr(V, 4), vr(P, 4), vr(O, 16))
        tr = tree_ops(Sn) if do_next else []
        for i in range(8):
            ex(8 + i)
            if i < len(tr): tr[i]()
        for k in range(4, 8):
            cv(k)
        if do_next:
            a('v_cmp_lt_f32', 'vcc', 's40', vr(VTM))
        a('v_mfma_f32_32x32x16_bf16', vr(O, 16), vr(V + 4, 4), vr(P + 4, 4), vr(O, 16))
        if do_next:
            if vread: readsV(*vread)
            rare(Sn)
        if post: post()

    stage_issue('s29', 3)
    a('s_mul_i32', 's37', 's33', REC_KV)
    a('v_add_u32', AK0, 's37', 'v5'); a('v_add_u32', AK1, 's37', 'v6'); a('v_add_u32', AV, 's37', 'v7')
    a('v_add_u32', BK0, K2_BUF, AK0); a('v_add_u32', BK1, K2_BUF, AK1); a('v_add_u32', BV, K2_BUF, AV)
    a('s_waitcnt', 'vmcnt(0)')
    stage_write('v9')
    a('s_waitcnt', 'lgkmcnt(0)')
    a('s_barrier')
    stamp()
    readsK(AK0, AK1, 0)
    a('s_waitcnt', 'lgkmcnt(0)')
    init_max(SB[0], None)
    qk(SB[0])
    readsK(AK0, AK1, TS)
    readsV(AV, 0)
    check_now(SB[0])
    stamp()
    a('s_mov_b32', 's42', 0)
    a('s_mov_b32', 's43', 1)
    a('s_lshl_b32', 's35', 's25', 3)
    a('s_max_i32', 's35', 's35', 8)
    a('s_sub_u32', 's35', 's35', 8)
    a('s_mul_i32', 's36', 's35', REC_KV)
    a('s_mul_i32', 's38', 's24', HSZ_KV)
    a('s_add_u32', 's36', 's36', 's38')
    a('s_add_u32', 's36', 's36', KV_B)
    def chunk(last):
        if not last:
            a('s_add_u32', 's44', 's42', 1)
            a('s_mul_i32', 's44', 's44', 16 * REC_KV)
            a('s_add_u32', 's44', 's44', 's29')
            stage_issue('s44', 3)
        else:
            stage_issue('s36', 3)
        a('s_mul_i32', 's45', 's43', K2_BUF)
        a('v_add_u32', AW, 's45', 'v9')
        def wr():
            a('s_waitcnt', 'vmcnt(0)')
            stage_write(AW)
        for j in range(8):
            cur = j % 2
            if j == 6 and not last:
                a('s_barrier')
            fin = last and j == 7
            if j <= 5: kr = (AK0, AK1, (j + 2) * TS)
            else: kr = None if last else (BK0, BK1, (j - 6) * TS)
            if j <= 6: vrd = (AV, (j + 1) * TS)
            else: vrd = None if last else (BV, 0)
            pstep(cur, 1 - cur, kr, vrd, not fin, xw=(3 if j == 4 else 0),
                  post=(wr if j == 3 else None))
    Lc = 'k2_chunk'
    a.label(Lc)
    chunk(False)
    a('v_mov_b32', AK0, BK0); a('v_mov_b32', AK1, BK1); a('v_mov_b32', AV, BV)
    a('s_add_u32', 's42', 's42', 1)
    a('s_add_u32', 's43', 's43', 1)
    a('s_cmp_ge_u32', 's43', 3)
    a('s_cselect_b32', 's43', 0, 's43')
    a('s_mul_i32', 's45', 's43', K2_BUF)
    a('s_add_u32', 's45', 's45', 's37')
    a('v_add_u32', BK0, 's45', 'v5'); a('v_add_u32', BK1, 's45', 'v6'); a('v_add_u32', BV, 's45', 'v7')
    a('s_cmp_lt_u32', 's42', 3)
    a('s_cbranch_scc1', Lc)
    stamp()
    chunk(True)
    stamp()

    def merge_epilogue(tag, obase_sreg, lds_off):
        Lg0 = 'k2_g0_' + tag; Ldone = 'k2_md_' + tag
        a('s_barrier')
        a('s_and_b32', 's44', 's27', 7)
        a('s_mul_i32', 's44', 's44', 13 * 256)
        a('s_add_u32', 's44', 's44', lds_off)
        a('v_lshlrev_b32', vr(VD), 2, 'v2')
        a('v_add_u32', vr(VD), 's44', vr(VD))
        a('s_cmp_eq_u32', 's33', 0)
        a('s_cbranch_scc1', Lg0)
        for r in range(12):
            a('ds_write_b32', vr(VD), vr(O + r), mods='offset:%d' % (r * 256))
        a('ds_write_b32', vr(VD), vr(VM), mods='offset:%d' % (12 * 256))
        a('s_waitcnt', 'lgkmcnt(0)')
        a('s_barrier')
        a('s_branch', Ldone)
        a.label(Lg0)
        a('s_barrier')
        for r in range(12):
            a('ds_read_b32', vr(SB[0] + r), vr(VD), mods='offset:%d' % (r * 256))
        a('ds_read_b32', vr(SB[0] + 12), vr(VD), mods='offset:%d' % (12 * 256))
        a('s_waitcnt', 'lgkmcnt(0)')
        a('v_max_f32', vr(VT), vr(VM), vr(SB[0] + 12))
        a('v_sub_f32', vr(VTM), vr(VM), vr(VT))
        a('v_sub_f32', vr(VT2), vr(SB[0] + 12), vr(VT))
        a('v_exp_f32', vr(VTM), vr(VTM))
        a('v_exp_f32', vr(VT2), vr(VT2))
        for r in range(12):
            a('v_mul_f32', vr(O + r), vr(O + r), vr(VTM))
            a('v_fmac_f32', vr(O + r), vr(SB[0] + r), vr(VT2))
        a('v_mov_b32', vr(VD), vr(O + 8))
        a('v_mov_b32', vr(VT), vr(O + 8))
        a('v_permlane32_swap_b32', vr(VD), vr(VT))
        a('v_rcp_f32', vr(VT), vr(VT))
        for r in range(12):
            a('v_mul_f32', vr(O + r), vr(O + r), vr(VT))
        for k in range(6):
            a('v_cvt_pk_bf16_f32', vr(P + k), vr(O + 2 * k), vr(O + 2 * k + 1))
        a('s_lshl_b32', 's43', 's28', 5)
        a('v_add_u32', vr(VD), 's43', 'v3')
        a('s_movk_i32', 's44', 1280)
        a('v_mul_lo_u32', vr(VD), vr(VD), 's44')
        a('v_lshl_add_u32', vr(VD), 'v4', 3, vr(VD))
        a('s_mul_i32', 's44', 's24', 40)
        a('s_add_u32', 's44', 's44', obase_sreg)
        a('buffer_store_dwordx2', vr(P, 2), vr(VD), 's[20:23]', 's44', mods='offen')
        a('buffer_store_dwordx2', vr(P + 2, 2), vr(VD), 's[20:23]', 's44', mods='offen offset:16')
        a('s_mov_b32', 'exec_hi', 0)
        a('buffer_store_dwordx2', vr(P + 4, 2), vr(VD), 's[20:23]', 's44', mods='offen offset:32')
        a('s_mov_b64', 'exec', -1)
        a.label(Ldone)

    a('s_mul_i32', 's46', 's24', HSZ_Q)
    a('s_mul_i32', 's47', 's28', REC_Q)
    a('s_add_u32', 's46', 's46', 's47')
    a('s_add_u32', 's46', 's46', Q_B)
    a('buffer_load_dwordx4', vr(Q0, 4), 'v5', 's[20:23]', 's46', mods='offen')
    a('v_subrev_u32', vr(VT2), 1024, 'v6')
    a('buffer_load_dword', vr(Q1), vr(VT2), 's[20:23]', 's46', mods='offen offset:1024')
    merge_epilogue('a', O_A, 0)
    stamp()
    a('v_lshlrev_b32', 'v10', 2, 'v4')
    a('v_sub_u32', 'v10', 'v3', 'v10')
    a('v_mov_b32', 'v11', hex(f32bits(-1e30)))
    a('s_sub_u32', 's44', 's28', 's35')
    a('s_mul_i32', 's45', 's44', REC_KV)
    a('s_add_u32', 's45', 's45', K2_BUF)
    a('v_add_u32', AK0, 's45', 'v5')
    a('v_add_u32', AK1, 's45', 'v6')
    a('v_add_u32', AV, 's45', 'v7')
    a('s_waitcnt', 'vmcnt(0)')
    Lb1 = 'k2_b1'; Lbm = 'k2_bm'; Lf = 'k2_bfull'; Lfe = 'k2_bfull_end'; Lempty = 'k2_bempty'
    def down(n=1):
        a('v_subrev_u32', AK0, n * REC_KV, AK0)
        a('v_subrev_u32', AK1, n * REC_KV, AK1)
        a('v_subrev_u32', AV, n * REC_KV, AV)
    a('s_cmp_lg_u32', 's33', 0)
    a('s_cbranch_scc1', Lb1)
    readsK(AK0, AK1); readsV(AV)
    a('s_waitcnt', 'lgkmcnt(0)')
    init_max(SB[0], 'diag')
    qk(SB[0]); check_now(SB[0], 'diag'); softmax_pv(SB[0])
    a('s_min_u32', 's46', 's28', 4)
    a('s_mov_b32', 's47', 0)
    a('s_branch', Lf)
    a.label(Lb1)
    a('s_cmp_lt_u32', 's28', 5)
    a('s_cbranch_scc1', Lempty)
    down(5)
    readsK(AK0, AK1); readsV(AV)
    a('s_waitcnt', 'lgkmcnt(0)')
    init_max(SB[0], None)
    qk(SB[0]); check_now(SB[0]); softmax_pv(SB[0])
    a('s_sub_u32', 's46', 's28', 5)
    a('s_min_u32', 's46', 's46', 2)
    a('s_cmp_ge_u32', 's28', 8)
    a('s_cselect_b32', 's47', 1, 0)
    a.label(Lf)
    a('s_cmp_eq_u32', 's46', 0)
    a('s_cbranch_scc1', Lfe)
    down()
    readsK(AK0, AK1); readsV(AV)
    a('s_waitcnt', 'lgkmcnt(2)')
    qk(SB[0]); check_now(SB[0])
    a('s_waitcnt', 'lgkmcnt(0)')
    softmax_pv(SB[0])
    a('s_sub_u32', 's46', 's46', 1)
    a('s_branch', Lf)
    a.label(Lfe)
    a('s_cmp_eq_u32', 's47', 0)
    a('s_cbranch_scc1', Lbm)
    down()
    readsK(AK0, AK1); readsV(AV)
    a('s_waitcnt', 'lgkmcnt(0)')
    qk(SB[0]); check_now(SB[0], 'edge'); softmax_pv(SB[0])
    a('s_branch', Lbm)
    a.label(Lempty)
    a('v_mov_b32', vr(VM), 'v11')
    for r in range(12):
        a('v_mov_b32', vr(O + r), 0)
    a.label(Lbm)
    merge_epilogue('b', O_B, 0)
    if 'stamp' in EXP:
        stamp()
        a('s_waitcnt', 'vmcnt(0) lgkmcnt(0)')
        a('s_cmp_lg_u32', 's27', 0)
        a('s_cbranch_scc1', Lexit)
        a('v_mov_b32', 'v4', 's70')
        a('v_mov_b32', 'v5', sr(70 + 2 * (nst[0] - 1)))
        a('v_mov_b32', 'v6', 0)
        a('v_mov_b32', 'v7', 0)
        a('s_lshl_b32', 's98', 's2', 4)
        a('s_add_u32', 's98', 's98', 0x2010000)
        a('v_mov_b32', 'v2', 0)
        a('buffer_store_dwordx4', 'v[4:7]', 'v2', 's[20:23]', 's98', mods='offen')
        a('s_cmp_lg_u32', 's2', 0)
        a('s_cbranch_scc1', Lexit)
        a('s_load_dwordx2', 's[60:61]', 's[0:1]', 64)
        a('s_waitcnt', 'lgkmcnt(0)')
        srd(a, 64, 60, 256)
        for i in range(nst[0]):
            a('v_mov_b32', 'v1', sr(70 + 2 * i))
            a('v_mov_b32', 'v2', 4 * i)
            a('buffer_store_dword', 'v1', 'v2', 's[64:67]', 0, mods='offen')
    a.label(Lexit)
    a('s_endpgm')
    return name, 128

K3_XROW = 272
K3_WROW = 160
K3_XSZ = 64 * K3_XROW
K3_WSZ = 128 * K3_WROW
K3_BUF = K3_XSZ + K3_WSZ
K3_LDS = 2 * K3_BUF

def gen_k3(a):
    name = 'oproj_kernel'; a.cur = 'k3'
    header(a, name)
    Lexit = 'k3_exit'
    a('s_cmp_ge_u32', 's2', 320)
    a('s_cbranch_scc1', Lexit)
    st = Stamps(a, kid=2)
    st()
    a('s_load_dwordx2', 's[4:5]', 's[0:1]', 16)
    a('s_load_dwordx2', 's[6:7]', 's[0:1]', 40)
    a('s_load_dwordx2', 's[8:9]', 's[0:1]', 56)
    a('s_load_dwordx2', 's[10:11]', 's[0:1]', 72)
    a('s_waitcnt', 'lgkmcnt(0)')
    srd(a, 12, 4, 640 * 640 * 2)
    srd(a, 16, 6, 640 * 640 * 2)
    srd(a, 20, 10, WS_SIZE)
    srd(a, 24, 8, 2048 * 640 * 2)
    a('s_and_b32', 's28', 's2', 31)
    a('s_lshr_b32', 's29', 's2', 5)
    a('v_lshrrev_b32', 'v1', 6, 'v0')
    a('v_readfirstlane_b32', 's30', 'v1')
    a('s_and_b32', 's31', 's30', 1)
    a('s_lshr_b32', 's32', 's30', 1)
    a('s_lshl_b32', 's33', 's28', 6)
    a('v_lshrrev_b32', 'v2', 4, 'v0')
    a('v_add_u32', 'v2', 's33', 'v2')
    a('s_movk_i32', 's34', 1280)
    a('v_mul_lo_u32', 'v2', 'v2', 's34')
    a('v_and_b32', 'v3', 15, 'v0')
    a('v_lshl_add_u32', 'v2', 'v3', 4, 'v2')
    a('v_lshrrev_b32', 'v3', 3, 'v0')
    a('v_mul_lo_u32', 'v3', 'v3', 's34')
    a('v_and_b32', 'v4', 7, 'v0')
    a('v_lshl_add_u32', 'v3', 'v4', 4, 'v3')
    a('s_lshl_b32', 's35', 's29', 7)
    a('v_add_u32', 'v3', 's35', 'v3')
    a('v_lshrrev_b32', 'v4', 4, 'v0')
    a('v_mul_u32_u24', 'v4', K3_XROW, 'v4')
    a('v_and_b32', 'v5', 15, 'v0')
    a('v_lshl_add_u32', 'v4', 'v5', 4, 'v4')
    a('v_add_u32', 'v5', K3_BUF, 'v4')
    a('v_lshrrev_b32', 'v6', 3, 'v0')
    a('v_mul_u32_u24', 'v6', K3_WROW, 'v6')
    a('v_and_b32', 'v7', 7, 'v0')
    a('v_lshl_add_u32', 'v6', 'v7', 4, 'v6')
    a('v_add_u32', 'v6', K3_XSZ, 'v6')
    a('v_add_u32', 'v7', K3_BUF, 'v6')
    a('v_and_b32', 'v12', 63, 'v0')
    a('v_and_b32', 'v13', 31, 'v12')
    a('v_lshrrev_b32', 'v14', 5, 'v12')
    a('s_lshl_b32', 's34', 's31', 5)
    a('v_add_u32', 'v8', 's34', 'v13')
    a('v_mul_u32_u24', 'v8', K3_XROW, 'v8')
    a('v_lshl_add_u32', 'v8', 'v14', 4, 'v8')
    a('v_add_u32', 'v9', K3_BUF, 'v8')
    a('v_and_b32', 'v15', 15, 'v12')
    a('v_lshrrev_b32', 'v10', 2, 'v15')
    a('v_lshl_add_u32', 'v10', 'v14', 3, 'v10')
    a('v_mul_u32_u24', 'v10', K3_WROW, 'v10')
    a('v_bfe_u32', 'v11', 'v12', 4, 1)
    a('v_lshlrev_b32', 'v11', 4, 'v11')
    a('v_and_b32', 'v15', 3, 'v15')
    a('v_lshl_add_u32', 'v11', 'v15', 2, 'v11')
    a('s_lshl_b32', 's34', 's32', 5)
    a('v_add_u32', 'v11', 's34', 'v11')
    a('v_lshl_add_u32', 'v10', 'v11', 1, 'v10')
    a('v_add_u32', 'v10', K3_XSZ, 'v10')
    a('v_add_u32', 'v11', K3_BUF, 'v10')
    ACC = (64, 80); ST0 = 96; FX = 16; FW = 32
    NPF = 3
    a('s_lshl_b32', 's34', 's31', 5)
    a('s_add_u32', 's34', 's34', 's33')
    a('v_add_u32', 'v48', 's34', 'v13')
    a('v_lshlrev_b32', 'v49', 2, 'v48')
    a('s_mov_b32', 's36', G_OFF)
    a('buffer_load_dword', 'v50', 'v49', 's[20:23]', 's36', mods='offen')
    for r in range(16):
        a('v_mov_b32', vr(ACC[0] + r), 0)
        a('v_mov_b32', vr(ACC[1] + r), 0)

    def issue_loads(rs):
        ST = ST0 + 32 * rs
        a('s_cmp_ge_u32', 's46', 5)
        cs(a, 's44', O_B - 5 * 256, O_A)
        a('s_cselect_b32', 's60', 's16', 's12')
        a('s_cselect_b32', 's61', 's17', 's13')
        a('s_cselect_b32', 's47', 5 * 128 * 1280, 0)
        a('s_lshl_b32', 's45', 's46', 8)
        a('s_add_u32', 's44', 's44', 's45')
        for i in range(4):
            a('buffer_load_dwordx4', vr(ST + 4 * i, 4), 'v2', 's[20:23]', 's44', mods='offen')
            if i < 3: a('s_add_u32', 's44', 's44', 16 * 1280)
        a('s_mul_i32', 's45', 's46', 128 * 1280)
        a('s_sub_u32', 's45', 's45', 's47')
        for i in range(4):
            a('buffer_load_dwordx4', vr(ST + 16 + 4 * i, 4), 'v3', 's[60:63]', 's45', mods='offen')
            if i < 3: a('s_add_u32', 's45', 's45', 32 * 1280)
        a('s_add_u32', 's46', 's46', 1)
    def write_lds(buf, rs):
        ST = ST0 + 32 * rs
        for i in range(4):
            a('ds_write_b128', 'v%d' % (4 + buf), vr(ST + 4 * i, 4), mods='offset:%d' % (i * 16 * K3_XROW))
        for i in range(4):
            a('ds_write_b128', 'v%d' % (6 + buf), vr(ST + 16 + 4 * i, 4), mods='offset:%d' % (i * 32 * K3_WROW))
    def frag_reads(buf, ks, st):
        a('ds_read_b128', vr(FX + st * 4, 4), 'v%d' % (8 + buf), mods='offset:%d' % (ks * 32))
        for hf in range(2):
            a('ds_read_b64_tr_b16', vr(FW + st * 4 + hf * 2, 2), 'v%d' % (10 + buf),
              mods='offset:%d' % (ks * 16 * K3_WROW + hf * 4 * K3_WROW))
    a('s_mov_b32', 's62', 640 * 640 * 2)
    a('s_mov_b32', 's63', '0x00020000')
    a('s_mov_b32', 's46', 0)
    issue_loads(0); issue_loads(1)
    a('s_waitcnt', 'vmcnt(8)')
    write_lds(0, 0)
    a('s_waitcnt', 'lgkmcnt(0)')
    a('s_barrier')
    NS = 4
    acc = vr(ACC[1], 16)
    def stage(buf, issue, last=False):
        if issue: issue_loads(buf)
        for ks in range(3): frag_reads(buf, ks, ks % NS)
        for ks in range(8):
            if ks + 3 < 8:
                frag_reads(buf, ks + 3, (ks + 3) % NS)
                a('s_waitcnt', 'lgkmcnt(9)')
            else:
                a('s_waitcnt', 'lgkmcnt(%d)' % (3 * (7 - ks)))
            a('v_mfma_f32_32x32x16_bf16', acc, vr(FW + (ks % NS) * 4, 4), vr(FX + (ks % NS) * 4, 4), acc)
        if not last:
            a('s_waitcnt', 'vmcnt(%d)' % (8 if issue else 0))
            write_lds(1 - buf, 1 - buf)
            a('s_waitcnt', 'lgkmcnt(0)')
            a('s_barrier')
    st()
    a('s_mov_b32', 's48', 0)
    L = 'k3_loop'
    a.label(L)
    stage(0, True)
    sk = 'k3_noswitch'
    a('s_cmp_lg_u32', 's48', 2)
    a('s_cbranch_scc1', sk)
    for r in range(16):
        a('v_mov_b32', vr(ACC[0] + r), vr(ACC[1] + r))
    for r in range(16):
        a('v_mov_b32', vr(ACC[1] + r), 0)
    a.label(sk)
    stage(1, True)
    a('s_add_u32', 's48', 's48', 1)
    a('s_cmp_lt_u32', 's48', 4)
    a('s_cbranch_scc1', L)
    stage(0, False); stage(1, False, last=True)
    st()
    a('v_sub_f32', 'v51', '1.0', 'v50')
    for r in range(16):
        a('v_mul_f32', vr(ACC[0] + r), 'v50', vr(ACC[0] + r))
        a('v_fmac_f32', vr(ACC[0] + r), 'v51', vr(ACC[1] + r))
    a('s_movk_i32', 's34', 1280)
    a('v_mul_lo_u32', 'v52', 'v48', 's34')
    a('v_lshl_add_u32', 'v52', 'v14', 3, 'v52')
    a('s_lshl_b32', 's34', 's29', 7)
    a('s_lshl_b32', 's35', 's32', 6)
    a('s_add_u32', 's34', 's34', 's35')
    for rg in range(4):
        a('v_cvt_pk_bf16_f32', vr(54 + 2 * rg), vr(ACC[0] + 4 * rg), vr(ACC[0] + 4 * rg + 1))
        a('v_cvt_pk_bf16_f32', vr(55 + 2 * rg), vr(ACC[0] + 4 * rg + 2), vr(ACC[0] + 4 * rg + 3))
        a('buffer_store_dwordx2', vr(54 + 2 * rg, 2), 'v52', 's[24:27]', 's34', mods='offen offset:%d' % (16 * rg))
    st.dump(0, 's30', Lexit)
    a.label(Lexit)
    a('s_endpgm')
    return name, 160

class FAsm(Asm):
    cur = ''
    def __call__(self, op, *ops, mods=''):
        for tok in EXP.split(','):
            if ':' in tok:
                k, pre = tok.split(':')
                if k == self.cur and op.startswith(pre): return
        Asm.__call__(self, op, *ops, mods=mods)

def main(out):
    a = FAsm()
    hdr = '''; gated mix of full attention and sliding-window attention  (generated by gen/gen.py)
; @launch kernel=qkv_kernel grid=(%d,1,1) block=(256,1,1) lds=%d
; @launch kernel=attn_kernel grid=(256,1,1) block=(1024,1,1) lds=%d
; @launch kernel=oproj_kernel grid=(320,1,1) block=(256,1,1) lds=%d
.amdgcn_target "amdgcn-amd-amdhsa--gfx950"
.text
''' % (K1_NWG + K1_GATE_WG, K1_LDS, K2_LDS, K3_LDS)
    ks = [gen_k1(a), gen_k2(a), gen_k3(a)]
    txt = hdr + a.text() + '.section .rodata,"a"\n' + ''.join(descriptor(n, v) for n, v in ks)
    open(out, 'w').write(txt)

if __name__ == '__main__':
    main(sys.argv[1] if len(sys.argv) > 1 else 'gated_mix__mha_block__sliding_block__prompt.s')
```

```python
import sys, os
EXP = os.environ.get('EXP', '')
sys.path.insert(0, 'gen')
from emit import Asm, vr, sr

REC_KV = 2624
HSZ_KV = 64 * REC_KV
REC_Q = 1280
HSZ_Q = 64 * REC_Q
KV_A, KV_B = 0x0, 0x600000
Q_A, Q_B = 0xC00000, 0xF00000
O_A, O_B = 0x1200000, 0x1500000
G_OFF = 0x1800000
WS_SIZE = 0x10000000
CSCALE = (20 ** -0.5) * 1.4426950408889634

def f32bits(x):
    import struct
    return struct.unpack('<I', struct.pack('<f', x))[0]

def srd(a, dst, ptr, size):
    a('s_mov_b32', sr(dst), sr(ptr))
    a('s_and_b32', sr(dst + 1), sr(ptr + 1), '0xffff')
    a('s_mov_b32', sr(dst + 2), hex(size))
    a('s_mov_b32', sr(dst + 3), '0x00020000')

def cs(a, dst, t, f):
    a('s_mov_b32', dst, f)
    a('s_cselect_b32', dst, t, dst)

class Stamps:
    def __init__(self, a, base=70, kid=0):
        self.a = a; self.n = 0; self.base = base; self.kid = kid
    def __call__(self):
        if 'stamp' in EXP:
            self.a('s_memrealtime', sr(self.base + 2 * self.n, 2)); self.n += 1
    def dump(self, wgid, wave_sreg, skip):
        a = self.a
        if 'stamp' not in EXP: return
        self()
        a('s_waitcnt', 'vmcnt(0) lgkmcnt(0)')
        a('s_mov_b64', 'exec', -1)
        a('s_cmp_lg_u32', wave_sreg, 0)
        a('s_cbranch_scc1', skip)
        a('s_getreg_b32', 's98', 'hwreg(HW_REG_HW_ID)')
        a('s_getreg_b32', 's99', 'hwreg(HW_REG_XCC_ID)')
        a('v_mov_b32', 'v4', sr(self.base))
        a('v_mov_b32', 'v5', sr(self.base + 2 * (self.n - 1)))
        a('v_mov_b32', 'v6', 's98')
        a('v_mov_b32', 'v7', 's99')
        a('s_lshl_b32', 's98', 's2', 4)
        a('s_add_u32', 's98', 's98', 0x2000000 + self.kid * 0x10000)
        a('v_mov_b32', 'v2', 0)
        a('buffer_store_dwordx4', 'v[4:7]', 'v2', 's[20:23]', 's98', mods='offen')
        a('s_cmp_lg_u32', 's2', wgid)
        a('s_cbranch_scc1', skip)
        a('s_load_dwordx2', 's[96:97]', 's[0:1]', 64)
        a('s_waitcnt', 'lgkmcnt(0)')
        srd(a, 92, 96, 256)
        for i in range(self.n):
            a('v_mov_b32', 'v1', sr(self.base + 2 * i))
            a('v_mov_b32', 'v2', 4 * i)
            a('buffer_store_dword', 'v1', 'v2', 's[92:95]', 0, mods='offen')

def header(a, name):
    a.raw('.globl %s' % name)
    a.raw('.p2align 8')
    a.raw('.type %s,@function' % name)
    a.raw('%s:' % name)
    a.hist = []

def descriptor(name, vgpr, sgpr=102):
    acc = (vgpr + 3) // 4 * 4
    return '''.p2align 6
.amdhsa_kernel %s
  .amdhsa_next_free_vgpr %d
  .amdhsa_next_free_sgpr %d
  .amdhsa_accum_offset %d
  .amdhsa_group_segment_fixed_size 0
  .amdhsa_kernarg_size 80
  .amdhsa_user_sgpr_count 2
  .amdhsa_user_sgpr_kernarg_segment_ptr 1
  .amdhsa_system_sgpr_workgroup_id_x 1
.end_amdhsa_kernel
''' % (name, vgpr, sgpr, acc)

K1_NWG = 480
K1_GATE_WG = 32
K1_XROW = 144
K1_WROW = 320
K1_XSZ = 128 * K1_XROW
K1_WSZ = 64 * K1_WROW
K1_BUF = K1_XSZ + K1_WSZ
K1_LDS = 2 * K1_BUF

def gen_k1(a):
    name = 'qkv_kernel'; a.cur = 'k1'
    header(a, name)
    Lexit = 'k1_exit'; Lgate = 'k1_gate'
    a('s_cmp_ge_u32', 's2', K1_NWG + K1_GATE_WG)
    a('s_cbranch_scc1', Lexit)
    st = Stamps(a)
    st()
    a('s_load_dwordx2', 's[4:5]', 's[0:1]', 0)
    a('s_load_dwordx2', 's[6:7]', 's[0:1]', 8)
    a('s_load_dwordx2', 's[8:9]', 's[0:1]', 32)
    a('s_load_dwordx2', 's[10:11]', 's[0:1]', 72)
    a('s_load_dwordx2', 's[36:37]', 's[0:1]', 48)
    a('s_waitcnt', 'lgkmcnt(0)')
    srd(a, 12, 4, 2048 * 640 * 2)
    srd(a, 20, 10, WS_SIZE)
    a('s_cmp_ge_u32', 's2', K1_NWG)
    a('s_cbranch_scc1', Lgate)
    a('s_and_b32', 's24', 's2', 15)
    a('s_lshr_b32', 's25', 's2', 4)
    a('s_mul_i32', 's26', 's25', 205)
    a('s_lshr_b32', 's26', 's26', 10)
    a('s_mul_i32', 's27', 's26', 5)
    a('s_sub_u32', 's27', 's25', 's27')
    a('s_lshl_b32', 's27', 's27', 7)
    a('s_cmp_ge_u32', 's26', 3)
    a('s_cselect_b32', 's6', 's8', 's6')
    a('s_cselect_b32', 's7', 's9', 's7')
    a('s_cselect_b32', 's31', 3, 0)
    a('s_sub_u32', 's31', 's26', 's31')
    srd(a, 16, 6, 640 * 1920 * 2)
    a('s_mul_i32', 's32', 's31', 640)
    a('s_add_u32', 's32', 's32', 's27')
    a('v_lshrrev_b32', 'v1', 6, 'v0')
    a('v_readfirstlane_b32', 's28', 'v1')
    a('s_and_b32', 's29', 's28', 1)
    a('s_lshr_b32', 's30', 's28', 1)
    a('s_lshl_b32', 's33', 's24', 7)
    a('v_lshrrev_b32', 'v2', 3, 'v0')
    a('v_add_u32', 'v2', 's33', 'v2')
    a('s_mov_b32', 's34', 1280)
    a('v_mul_lo_u32', 'v2', 'v2', 's34')
    a('v_and_b32', 'v3', 7, 'v0')
    a('v_lshl_add_u32', 'v2', 'v3', 4, 'v2')
    a('v_lshrrev_b32', 'v3', 4, 'v0')
    a('s_mov_b32', 's34', 3840)
    a('v_mul_lo_u32', 'v3', 'v3', 's34')
    a('v_and_b32', 'v4', 15, 'v0')
    a('v_lshl_add_u32', 'v3', 'v4', 4, 'v3')
    a('s_lshl_b32', 's34', 's32', 1)
    a('v_add_u32', 'v3', 's34', 'v3')
    a('v_lshrrev_b32', 'v4', 3, 'v0')
    a('v_mul_u32_u24', 'v4', K1_XROW, 'v4')
    a('v_and_b32', 'v5', 7, 'v0')
    a('v_lshl_add_u32', 'v4', 'v5', 4, 'v4')
    a('v_add_u32', 'v5', K1_BUF, 'v4')
    a('v_lshrrev_b32', 'v6', 4, 'v0')
    a('v_mul_u32_u24', 'v6', K1_WROW, 'v6')
    a('v_and_b32', 'v7', 15, 'v0')
    a('v_lshl_add_u32', 'v6', 'v7', 4, 'v6')
    a('v_add_u32', 'v6', K1_XSZ, 'v6')
    a('v_add_u32', 'v7', K1_BUF, 'v6')
    a('v_and_b32', 'v12', 63, 'v0')
    a('v_and_b32', 'v13', 31, 'v12')
    a('v_lshrrev_b32', 'v14', 5, 'v12')
    a('s_lshl_b32', 's34', 's29', 6)
    a('v_add_u32', 'v8', 's34', 'v13')
    a('v_mul_u32_u24', 'v8', K1_XROW, 'v8')
    a('v_lshl_add_u32', 'v8', 'v14', 4, 'v8')
    a('v_add_u32', 'v9', K1_BUF, 'v8')
    a('v_and_b32', 'v15', 15, 'v12')
    a('v_lshrrev_b32', 'v10', 2, 'v15')
    a('v_lshl_add_u32', 'v10', 'v14', 3, 'v10')
    a('v_mul_u32_u24', 'v10', K1_WROW, 'v10')
    a('v_bfe_u32', 'v11', 'v12', 4, 1)
    a('v_lshlrev_b32', 'v11', 4, 'v11')
    a('v_and_b32', 'v15', 3, 'v15')
    a('v_lshl_add_u32', 'v11', 'v15', 2, 'v11')
    a('s_lshl_b32', 's34', 's30', 6)
    a('v_add_u32', 'v11', 's34', 'v11')
    a('v_lshl_add_u32', 'v10', 'v11', 1, 'v10')
    a('v_add_u32', 'v10', K1_XSZ, 'v10')
    a('v_add_u32', 'v11', K1_BUF, 'v10')
    for i in range(4):
        a('s_mov_b32', sr(40 + i), 40960 * i)
    ACC = 64; ST0 = 128; FX = 16; FW = 32

    def issue_loads(rs):
        ST = ST0 + 32 * rs
        for i in range(4):
            a('buffer_load_dwordx4', vr(ST + 4 * i, 4), 'v2', 's[12:15]', sr(40 + i), mods='offen')
        for i in range(4):
            a('buffer_load_dwordx4', vr(ST + 16 + 4 * i, 4), 'v3', 's[16:19]', 's44', mods='offen')
            a('s_add_u32', 's44', 's44', 16 * 3840)
        for i in range(4):
            a('s_add_u32', sr(40 + i), sr(40 + i), 128)
    def write_lds(buf, rs):
        ST = ST0 + 32 * rs
        for i in range(4):
            a('ds_write_b128', 'v%d' % (4 + buf), vr(ST + 4 * i, 4), mods='offset:%d' % (i * 32 * K1_XROW))
        for i in range(4):
            a('ds_write_b128', 'v%d' % (6 + buf), vr(ST + 16 + 4 * i, 4), mods='offset:%d' % (i * 16 * K1_WROW))
    def frag_reads(buf, ks, st):
        for bi in range(2):
            a('ds_read_b128', vr(FX + st * 8 + bi * 4, 4), 'v%d' % (8 + buf), mods='offset:%d' % (bi * 32 * K1_XROW + ks * 32))
        for bj in range(2):
            for hf in range(2):
                a('ds_read_b64_tr_b16', vr(FW + st * 8 + bj * 4 + hf * 2, 2), 'v%d' % (10 + buf),
                  mods='offset:%d' % (ks * 16 * K1_WROW + bj * 64 + hf * 4 * K1_WROW))

    def mainloop(vorient, tag):
        for r in range(64):
            a('v_mov_b32', vr(ACC + r), 0)
        a('s_mov_b32', 's44', 0)
        issue_loads(0); issue_loads(1)
        a('s_waitcnt', 'vmcnt(8)')
        write_lds(0, 0)
        a('s_waitcnt', 'lgkmcnt(0)')
        a('s_barrier')
        def compute(buf):
            frag_reads(buf, 0, 0)
            for ks in range(4):
                st = ks % 2
                if ks < 3:
                    frag_reads(buf, ks + 1, 1 - st)
                    a('s_waitcnt', 'lgkmcnt(6)')
                else:
                    a('s_waitcnt', 'lgkmcnt(0)')
                for bi in range(2):
                    for bj in range(2):
                        acc = vr(ACC + (bi * 2 + bj) * 16, 16)
                        xf = vr(FX + st * 8 + bi * 4, 4); wf = vr(FW + st * 8 + bj * 4, 4)
                        if vorient: a('v_mfma_f32_32x32x16_bf16', acc, xf, wf, acc)
                        else: a('v_mfma_f32_32x32x16_bf16', acc, wf, xf, acc)
        def stage(buf, issue, last=False):
            if issue: issue_loads(buf)
            compute(buf)
            if not last:
                a('s_waitcnt', 'vmcnt(%d)' % (8 if issue else 0))
                write_lds(1 - buf, 1 - buf)
                a('s_waitcnt', 'lgkmcnt(0)')
                a('s_barrier')
        if tag == 'qk': st()
        a('s_mov_b32', 's45', 0)
        L = 'k1_loop_' + tag
        a.label(L)
        stage(0, True); stage(1, True)
        a('s_add_u32', 's45', 's45', 1)
        a('s_cmp_lt_u32', 's45', 4)
        a('s_cbranch_scc1', L)
        stage(0, False); stage(1, False, last=True)

    Lv = 'k1_vpath'
    a('s_cmp_eq_u32', 's31', 2)
    a('s_cbranch_scc1', Lv)
    mainloop(False, 'qk')
    st()
    a('s_cmp_eq_u32', 's31', 0)
    cs(a, 's45', hex(f32bits(CSCALE)), hex(f32bits(1.0)))
    for r in range(64):
        a('v_mul_f32', vr(ACC + r), 's45', vr(ACC + r))
    cs(a, 's46', HSZ_Q, HSZ_KV)
    cs(a, 's47', REC_Q, REC_KV)
    a('s_cmp_ge_u32', 's26', 3)
    cs(a, 's48', Q_B, Q_A)
    cs(a, 's49', KV_B, KV_A)
    a('s_cmp_eq_u32', 's31', 0)
    a('s_cselect_b32', 's48', 's48', 's49')
    a('s_lshl_b32', 's49', 's24', 2)
    a('s_lshl_b32', 's50', 's29', 1)
    a('s_add_u32', 's49', 's49', 's50')
    a('s_mul_i32', 's49', 's49', 's47')
    a('s_add_u32', 's48', 's48', 's49')
    a('s_add_u32', 's49', 's48', 's47')
    a('s_mov_b64', 's[52:53]', -1)
    a('s_mov_b32', 's52', 0)
    a('s_mov_b64', 's[54:55]', -1)
    a('s_mov_b32', 's55', 0)
    a('s_lshr_b32', 's50', 's27', 2)
    a('s_lshl_b32', 's51', 's30', 4)
    a('s_add_u32', 's50', 's50', 's51')
    T = 48
    for bj in range(2):
        for rg in range(4):
            for h in range(2):
                o = 60 + 3 * h
                a('s_add_u32', 's56', 's50', bj * 8 + 2 * rg + h)
                a('s_mul_i32', 's57', 's56', 205)
                a('s_lshr_b32', 's57', 's57', 10)
                a('s_mul_i32', 's58', 's57', 5)
                a('s_sub_u32', sr(o + 2), 's56', 's58')
                a('s_mul_i32', 's57', 's57', 's46')
                a('s_lshr_b32', 's58', sr(o + 2), 1)
                a('s_lshl_b32', 's58', 's58', 9)
                a('s_and_b32', 's59', sr(o + 2), 1)
                a('s_lshl_b32', 's59', 's59', 3)
                a('s_add_u32', sr(o), 's57', 's58')
                a('s_add_u32', sr(o), sr(o), 's59')
                a('s_add_u32', sr(o + 1), 's57', 1024)
            a('s_mov_b64', 's[66:67]', -1)
            a('s_cmp_eq_u32', 's62', 4)
            a('s_cselect_b64', 's[66:67]', 's[52:53]', 's[66:67]')
            a('s_cmp_eq_u32', 's65', 4)
            a('s_cselect_b64', 's[66:67]', 's[54:55]', 's[66:67]')
            a('v_mov_b32', vr(T), 's60')
            a('v_mov_b32', vr(T + 1), 's63')
            a('v_cndmask_b32', vr(T), vr(T), vr(T + 1), 's[52:53]')
            a('v_lshl_add_u32', vr(T), 'v13', 4, vr(T))
            a('v_mov_b32', vr(T + 2), 's61')
            a('v_mov_b32', vr(T + 1), 's64')
            a('v_cndmask_b32', vr(T + 2), vr(T + 2), vr(T + 1), 's[52:53]')
            a('v_lshl_add_u32', vr(T + 2), 'v13', 2, vr(T + 2))
            for bi in range(2):
                base = ACC + (bi * 2 + bj) * 16 + rg * 4
                a('v_cvt_pk_bf16_f32', vr(T + 4 + bi * 2), vr(base), vr(base + 1))
                a('v_cvt_pk_bf16_f32', vr(T + 5 + bi * 2), vr(base + 2), vr(base + 3))
            a('s_mov_b64', 'exec', 's[66:67]')
            for bi in range(2):
                a('buffer_store_dwordx2', vr(T + 4 + bi * 2, 2), vr(T), 's[20:23]', sr(48 + bi), mods='offen')
            skip = a.newlabel('k1_s')
            a('s_andn2_b64', 'exec', -1, 's[66:67]')
            a('s_cbranch_scc0', skip)
            for bi in range(2):
                a('buffer_store_dword', vr(T + 4 + bi * 2), vr(T + 2), 's[20:23]', sr(48 + bi), mods='offen')
                a('buffer_store_dword', vr(T + 5 + bi * 2), vr(T + 2), 's[20:23]', sr(48 + bi), mods='offen offset:128')
            a.label(skip)
            a('s_mov_b64', 'exec', -1)
    st.dump(0, 's28', Lexit)
    a('s_branch', Lexit)
    a.label(Lv)
    mainloop(True, 'v')
    a('s_cmp_ge_u32', 's26', 3)
    cs(a, 's48', KV_B, KV_A)
    a('s_lshl_b32', 's49', 's24', 2)
    a('s_lshl_b32', 's50', 's29', 1)
    a('s_add_u32', 's49', 's49', 's50')
    a('s_mul_i32', 's49', 's49', REC_KV)
    a('s_add_u32', 's48', 's48', 's49')
    a('s_add_u32', 's49', 's48', REC_KV)
    T = 48
    for k in range(4):
        a('v_mov_b32', vr(T + 8 + k), '0x3f803f80')
    for bj in range(2):
        a('s_lshl_b32', 's50', 's30', 6)
        a('s_add_u32', 's50', 's50', 's27')
        a('s_add_u32', 's50', 's50', bj * 32)
        a('v_add_u32', vr(T), 's50', 'v13')
        a('v_mul_u32_u24', vr(T + 1), 3277, vr(T))
        a('v_lshrrev_b32', vr(T + 1), 16, vr(T + 1))
        a('v_mul_u32_u24', vr(T + 2), 20, vr(T + 1))
        a('v_sub_u32', vr(T + 2), vr(T), vr(T + 2))
        a('s_mov_b32', 's51', HSZ_KV)
        a('v_mul_lo_u32', vr(T + 1), vr(T + 1), 's51')
        a('v_lshl_add_u32', vr(T + 1), vr(T + 2), 4, vr(T + 1))
        a('v_mul_u32_u24', vr(T + 3), 336, 'v14')
        a('v_add_u32', vr(T + 1), vr(T + 1), vr(T + 3))
        a('v_add_u32', vr(T + 1), 1280, vr(T + 1))
        a('v_cmp_eq_u32', 's[56:57]', 0, vr(T + 2))
        for bi in range(2):
            base = ACC + (bi * 2 + bj) * 16
            for c in range(2):
                for k in range(4):
                    a('v_cvt_pk_bf16_f32', vr(T + 4 + k), vr(base + c * 8 + 2 * k), vr(base + c * 8 + 2 * k + 1))
                a('buffer_store_dwordx4', vr(T + 4, 4), vr(T + 1), 's[20:23]', sr(48 + bi), mods='offen offset:%d' % (c * 672))
        skip = a.newlabel('k1_v')
        a('s_and_b64', 'exec', 's[56:57]', 's[56:57]')
        a('s_cbranch_scc0', skip)
        for bi in range(2):
            for c in range(2):
                a('buffer_store_dwordx4', vr(T + 8, 4), vr(T + 1), 's[20:23]', sr(48 + bi), mods='offen offset:%d' % (c * 672 + 320))
        a.label(skip)
        a('s_mov_b64', 'exec', -1)
    a('s_branch', Lexit)
    a.label(Lgate)
    srd(a, 16, 36, 640 * 2)
    a('s_sub_u32', 's24', 's2', K1_NWG)
    a('v_lshrrev_b32', 'v1', 2, 'v0')
    a('s_lshl_b32', 's25', 's24', 6)
    a('v_add_u32', 'v1', 's25', 'v1')
    a('v_and_b32', 'v2', 3, 'v0')
    a('v_mul_u32_u24', 'v2', 320, 'v2')
    a('s_mov_b32', 's26', 1280)
    a('v_mul_lo_u32', 'v3', 'v1', 's26')
    a('v_add_u32', 'v3', 'v3', 'v2')
    for i in range(20):
        a('buffer_load_dwordx4', vr(16 + 4 * i, 4), 'v3', 's[12:15]', 0, mods='offen offset:%d' % (16 * i))
    for i in range(20):
        a('buffer_load_dwordx4', vr(96 + 4 * i, 4), 'v2', 's[16:19]', 0, mods='offen offset:%d' % (16 * i))
    a('v_mov_b32', 'v4', 0)
    a('v_mov_b32', 'v5', 0)
    a('s_waitcnt', 'vmcnt(0)')
    for i in range(80):
        a('v_lshlrev_b32', 'v6', 16, vr(16 + i))
        a('v_lshlrev_b32', 'v7', 16, vr(96 + i))
        a('v_fmac_f32', 'v4', 'v6', 'v7')
        a('v_and_b32', 'v8', '0xffff0000', vr(16 + i))
        a('v_and_b32', 'v9', '0xffff0000', vr(96 + i))
        a('v_fmac_f32', 'v5', 'v8', 'v9')
    a('v_add_f32', 'v4', 'v4', 'v5')
    for off in ('0x041F', '0x081F'):
        a('ds_swizzle_b32', 'v5', 'v4', mods='offset:%s' % off)
        a('s_waitcnt', 'lgkmcnt(0)')
        a('v_add_f32', 'v4', 'v4', 'v5')
    a('v_mul_f32', 'v4', hex(f32bits(-1.4426950408889634)), 'v4')
    a('v_exp_f32', 'v4', 'v4')
    a('v_add_f32', 'v4', '1.0', 'v4')
    a('v_rcp_f32', 'v4', 'v4')
    a('v_lshlrev_b32', 'v5', 2, 'v1')
    a('v_and_b32', 'v6', 3, 'v0')
    a('v_cmp_eq_u32', 'vcc', 0, 'v6')
    a('s_and_b64', 'exec', 'vcc', 'vcc')
    a('s_mov_b32', 's27', G_OFF)
    a('buffer_store_dword', 'v4', 'v5', 's[20:23]', 's27', mods='offen')
    a.label(Lexit)
    a('s_endpgm')
    return name, 192

K2_BUF = 49152
K2_LDS = 3 * K2_BUF
K2_NWG = 256
TMAX = float(os.environ.get('TMAX', '64.0'))

def gen_k2(a):
    name = 'attn_kernel'; a.cur = 'k2'
    header(a, name)
    Lexit = 'k2_exit'; LB = 'k2_bpath'; Lepi = 'k2_epi'; Lmerge = 'k2_merge'
    Q0 = 16; Q1 = 20; BIAS = 24; SB = (40, 56); P = 72; O = 80; K0 = 96; K1 = 100; V = 104; ST = 112
    AK0 = 'v124'; AK1 = 'v125'; AV = 'v126'; AW = 'v127'
    BK0 = 'v10'; BK1 = 'v11'; BV = 'v8'
    VM = 12; VTM = 13; VD = 14; VT = 15; VT2 = 1
    TS = 2 * REC_KV
    nst = [0]
    def stamp():
        if 'stamp' in EXP:
            a('s_memrealtime', sr(70 + 2 * nst[0], 2)); nst[0] += 1
    a('s_cmp_ge_u32', 's2', 256 if 'noB' in EXP else K2_NWG)
    a('s_cbranch_scc1', Lexit)
    stamp()
    a('s_load_dwordx2', 's[10:11]', 's[0:1]', 72)
    a('s_waitcnt', 'lgkmcnt(0)')
    srd(a, 20, 10, WS_SIZE)
    a('s_and_b32', 's24', 's2', 31)
    a('s_lshr_b32', 's25', 's2', 5)
    a('v_lshrrev_b32', 'v1', 6, 'v0')
    a('v_readfirstlane_b32', 's27', 'v1')
    a('s_cmp_ge_u32', 's25', 8)
    a('s_cselect_b32', 's26', 1, 0)
    a('s_lshr_b32', 's33', 's27', 3)
    a('s_and_b32', 's34', 's27', 7)
    a('s_lshl_b32', 's28', 's25', 3)
    a('s_add_u32', 's28', 's28', 's34')
    a('s_sub_u32', 's35', 's25', 8)
    a('s_lshl_b32', 's35', 's35', 4)
    a('s_add_u32', 's36', 's35', 's27')
    a('s_cmp_eq_u32', 's26', 0)
    a('s_cselect_b32', 's28', 's28', 's36')
    cs(a, 's29', KV_A, KV_B)
    cs(a, 's30', Q_A, Q_B)
    cs(a, 's31', O_A, O_B)
    a('s_mul_i32', 's32', 's24', HSZ_KV)
    a('s_add_u32', 's29', 's29', 's32')
    a('s_mul_i32', 's32', 's24', HSZ_Q)
    a('s_add_u32', 's30', 's30', 's32')
    a('s_mul_i32', 's32', 's28', REC_Q)
    a('s_add_u32', 's30', 's30', 's32')
    a('v_and_b32', 'v2', 63, 'v0')
    a('v_and_b32', 'v3', 31, 'v2')
    a('v_lshrrev_b32', 'v4', 5, 'v2')
    a('v_lshlrev_b32', 'v5', 4, 'v2')
    a('v_lshlrev_b32', 'v6', 2, 'v2')
    a('buffer_load_dwordx4', vr(Q0, 4), 'v5', 's[20:23]', 's30', mods='offen')
    a('buffer_load_dword', vr(Q1), 'v6', 's[20:23]', 's30', mods='offen offset:1024')
    for k in range(1, 4):
        a('v_mov_b32', vr(Q1 + k), 0)
        a('v_mov_b32', vr(K1 + k), 0)
    a('v_add_u32', 'v6', 1024, 'v6')
    a('v_min_u32', 'v7', 20, 'v3')
    a('v_subrev_u32', 'v8', 24, 'v3')
    a('v_cmp_le_u32', 'vcc', 28, 'v3')
    a('v_cndmask_b32', 'v7', 'v7', 'v8', 'vcc')
    a('v_lshlrev_b32', 'v7', 4, 'v7')
    a('v_mul_u32_u24', 'v8', 336, 'v4')
    a('v_add_u32', 'v7', 'v7', 'v8')
    a('v_add_u32', 'v7', 1280, 'v7')
    a('v_lshlrev_b32', 'v9', 4, 'v0')
    a('s_mov_b32', 's40', hex(f32bits(TMAX)))

    def stage_issue(soff, n, r0=0):
        for i in range(n):
            if i == 0: a('s_mov_b32', 's41', soff)
            else: a('s_add_u32', 's41', 's41', 16384)
            a('buffer_load_dwordx4', vr(ST + 4 * ((r0 + i) % 3), 4), 'v9', 's[20:23]', 's41', mods='offen')
    def stage_write(vaddr, n=3, off=0):
        for i in range(n):
            a('ds_write_b128', vaddr, vr(ST + 4 * i, 4), mods='offset:%d' % (off + i * 16384))
    def readsK(ak0, ak1, off=0):
        a('ds_read_b128', vr(K0, 4), ak0, mods='offset:%d' % off)
        a('ds_read_b32', vr(K1), ak1, mods='offset:%d' % off)
    def readsV(av, off=0):
        a('ds_read_b128', vr(V, 4), av, mods='offset:%d' % off)
        a('ds_read_b128', vr(V + 4, 4), av, mods='offset:%d' % (off + 672))
    def tree_ops(S):
        m3 = lambda d, x, y, z: (lambda: a('v_max3_f32', vr(d), vr(x), vr(y), vr(z)))
        T5 = 8
        ops = [m3(VTM, S, S + 1, S + 2), m3(VD, S + 3, S + 4, S + 5), m3(VT, S + 6, S + 7, S + 8),
               m3(VT2, S + 9, S + 10, S + 11),
               m3(VTM, VTM, S + 12, S + 13), m3(VD, VD, S + 14, S + 15),
               m3(VT, VT, VT2, VTM),
               (lambda: a('v_max_f32', vr(VTM), vr(VT), vr(VD)))]
        return ops
    def crosshalf():
        a('v_mov_b32', vr(VD), vr(VTM))
        a('v_permlane32_swap_b32', vr(VD), vr(VTM))
        a('v_max_f32', vr(VTM), vr(VTM), vr(VD))
    def mask(S, kind):
        for r in range(16):
            cst = 8 * (r >> 2) + (r & 3)
            if kind == 'diag': a('v_cmp_le_i32', 'vcc', cst, 'v10')
            else: a('v_cmp_gt_i32', 'vcc', cst, 'v10')
            a('v_cndmask_b32', vr(S + r), 'v11', vr(S + r), 'vcc')
    def qk(S, c=None):
        a('v_mfma_f32_32x32x16_bf16', vr(S, 16), vr(K0, 4), vr(Q0, 4), vr(BIAS, 16) if c is None else c)
        a('v_mfma_f32_32x32x16_bf16', vr(S, 16), vr(K1, 4), vr(Q1, 4), vr(S, 16))
    def pv():
        a('v_mfma_f32_32x32x16_bf16', vr(O, 16), vr(V, 4), vr(P, 4), vr(O, 16))
        a('v_mfma_f32_32x32x16_bf16', vr(O, 16), vr(V + 4, 4), vr(P + 4, 4), vr(O, 16))
    def rare(S):
        skip = a.newlabel('k2_f')
        a.cbranch_keep('s_cbranch_vccz', skip)
        crosshalf()
        a('v_max_f32', vr(VD), 0, vr(VTM))
        a('v_add_f32', vr(VM), vr(VM), vr(VD))
        a('v_sub_f32', vr(VT), 0, vr(VD))
        a('v_exp_f32', vr(VT), vr(VT))
        for r in range(16):
            a('v_sub_f32', vr(S + r), vr(S + r), vr(VD))
            a('v_sub_f32', vr(BIAS + r), vr(BIAS + r), vr(VD))
            a('v_mul_f32', vr(O + r), vr(O + r), vr(VT))
        a.label_keep(skip)
    def init_max(S, kind):
        qk(S, 0)
        if kind: mask(S, kind)
        for f in tree_ops(S): f()
        crosshalf()
        a('v_mov_b32', vr(VM), vr(VTM))
        for r in range(16):
            a('v_sub_f32', vr(BIAS + r), 0, vr(VTM))
            a('v_mov_b32', vr(O + r), 0)
    def check_now(S, kind=None):
        if kind: mask(S, kind)
        for f in tree_ops(S): f()
        a('v_cmp_lt_f32', 'vcc', 's40', vr(VTM))
        rare(S)
    def softmax_pv(S):
        for r in range(16):
            a('v_exp_f32', vr(S + r), vr(S + r))
        for k in range(8):
            a('v_cvt_pk_bf16_f32', vr(P + k), vr(S + 2 * k), vr(S + 2 * k + 1))
        pv()

    def pstep(cur, nxt, kread, vread, do_next, xw=0, post=None):
        Sc = SB[cur]; Sn = SB[nxt]
        ex = lambda r: a('v_exp_f32', vr(Sc + r), vr(Sc + r))
        cv = lambda k: a('v_cvt_pk_bf16_f32', vr(P + k), vr(Sc + 2 * k), vr(Sc + 2 * k + 1))
        if do_next:
            a('s_waitcnt', 'lgkmcnt(%d)' % (2 + xw))
            a('v_mfma_f32_32x32x16_bf16', vr(Sn, 16), vr(K0, 4), vr(Q0, 4), vr(BIAS, 16))
        for r in range(0, 4): ex(r)
        if do_next:
            a('v_mfma_f32_32x32x16_bf16', vr(Sn, 16), vr(K1, 4), vr(Q1, 4), vr(Sn, 16))
            if kread: readsK(*kread)
        for r in range(4, 8): ex(r)
        for k in range(4): cv(k)
        a('s_waitcnt', 'lgkmcnt(%d)' % (((2 if kread else 0) + xw) if do_next else 0))
        a('v_mfma_f32_32x32x16_bf16', vr(O, 16), vr(V, 4), vr(P, 4), vr(O, 16))
        tr = tree_ops(Sn) if do_next else []
        for i in range(8):
            ex(8 + i)
            if i < len(tr): tr[i]()
        for k in range(4, 8):
            cv(k)
        if do_next:
            a('v_cmp_lt_f32', 'vcc', 's40', vr(VTM))
        a('v_mfma_f32_32x32x16_bf16', vr(O, 16), vr(V + 4, 4), vr(P + 4, 4), vr(O, 16))
        if do_next:
            if vread: readsV(*vread)
            rare(Sn)
        if post: post()

    stage_issue('s29', 3)
    a('s_mul_i32', 's37', 's33', REC_KV)
    a('v_add_u32', AK0, 's37', 'v5'); a('v_add_u32', AK1, 's37', 'v6'); a('v_add_u32', AV, 's37', 'v7')
    a('v_add_u32', BK0, K2_BUF, AK0); a('v_add_u32', BK1, K2_BUF, AK1); a('v_add_u32', BV, K2_BUF, AV)
    a('s_waitcnt', 'vmcnt(0)')
    stage_write('v9')
    a('s_waitcnt', 'lgkmcnt(0)')
    a('s_barrier')
    stamp()
    readsK(AK0, AK1, 0)
    a('s_waitcnt', 'lgkmcnt(0)')
    init_max(SB[0], None)
    qk(SB[0])
    readsK(AK0, AK1, TS)
    readsV(AV, 0)
    check_now(SB[0])
    stamp()
    a('s_mov_b32', 's42', 0)
    a('s_mov_b32', 's43', 1)
    a('s_lshl_b32', 's35', 's25', 3)
    a('s_max_i32', 's35', 's35', 8)
    a('s_sub_u32', 's35', 's35', 8)
    a('s_mul_i32', 's36', 's35', REC_KV)
    a('s_mul_i32', 's38', 's24', HSZ_KV)
    a('s_add_u32', 's36', 's36', 's38')
    a('s_add_u32', 's36', 's36', KV_B)
    def chunk(last):
        if not last:
            a('s_add_u32', 's44', 's42', 1)
            a('s_mul_i32', 's44', 's44', 16 * REC_KV)
            a('s_add_u32', 's44', 's44', 's29')
            stage_issue('s44', 3)
        else:
            stage_issue('s36', 3)
        a('s_mul_i32', 's45', 's43', K2_BUF)
        a('v_add_u32', AW, 's45', 'v9')
        def wr():
            a('s_waitcnt', 'vmcnt(0)')
            stage_write(AW)
        for j in range(8):
            cur = j % 2
            if j == 6 and not last:
                a('s_barrier')
            fin = last and j == 7
            if j <= 5: kr = (AK0, AK1, (j + 2) * TS)
            else: kr = None if last else (BK0, BK1, (j - 6) * TS)
            if j <= 6: vrd = (AV, (j + 1) * TS)
            else: vrd = None if last else (BV, 0)
            pstep(cur, 1 - cur, kr, vrd, not fin, xw=(3 if j == 4 else 0),
                  post=(wr if j == 3 else None))
    Lc = 'k2_chunk'
    a.label(Lc)
    chunk(False)
    a('v_mov_b32', AK0, BK0); a('v_mov_b32', AK1, BK1); a('v_mov_b32', AV, BV)
    a('s_add_u32', 's42', 's42', 1)
    a('s_add_u32', 's43', 's43', 1)
    a('s_cmp_ge_u32', 's43', 3)
    a('s_cselect_b32', 's43', 0, 's43')
    a('s_mul_i32', 's45', 's43', K2_BUF)
    a('s_add_u32', 's45', 's45', 's37')
    a('v_add_u32', BK0, 's45', 'v5'); a('v_add_u32', BK1, 's45', 'v6'); a('v_add_u32', BV, 's45', 'v7')
    a('s_cmp_lt_u32', 's42', 3)
    a('s_cbranch_scc1', Lc)
    stamp()
    chunk(True)
    stamp()

    def merge_epilogue(tag, obase_sreg, lds_off):
        Lg0 = 'k2_g0_' + tag; Ldone = 'k2_md_' + tag
        a('s_barrier')
        a('s_and_b32', 's44', 's27', 7)
        a('s_mul_i32', 's44', 's44', 13 * 256)
        a('s_add_u32', 's44', 's44', lds_off)
        a('v_lshlrev_b32', vr(VD), 2, 'v2')
        a('v_add_u32', vr(VD), 's44', vr(VD))
        a('s_cmp_eq_u32', 's33', 0)
        a('s_cbranch_scc1', Lg0)
        for r in range(12):
            a('ds_write_b32', vr(VD), vr(O + r), mods='offset:%d' % (r * 256))
        a('ds_write_b32', vr(VD), vr(VM), mods='offset:%d' % (12 * 256))
        a('s_waitcnt', 'lgkmcnt(0)')
        a('s_barrier')
        a('s_branch', Ldone)
        a.label(Lg0)
        a('s_barrier')
        for r in range(12):
            a('ds_read_b32', vr(SB[0] + r), vr(VD), mods='offset:%d' % (r * 256))
        a('ds_read_b32', vr(SB[0] + 12), vr(VD), mods='offset:%d' % (12 * 256))
        a('s_waitcnt', 'lgkmcnt(0)')
        a('v_max_f32', vr(VT), vr(VM), vr(SB[0] + 12))
        a('v_sub_f32', vr(VTM), vr(VM), vr(VT))
        a('v_sub_f32', vr(VT2), vr(SB[0] + 12), vr(VT))
        a('v_exp_f32', vr(VTM), vr(VTM))
        a('v_exp_f32', vr(VT2), vr(VT2))
        for r in range(12):
            a('v_mul_f32', vr(O + r), vr(O + r), vr(VTM))
            a('v_fmac_f32', vr(O + r), vr(SB[0] + r), vr(VT2))
        a('v_mov_b32', vr(VD), vr(O + 8))
        a('v_mov_b32', vr(VT), vr(O + 8))
        a('v_permlane32_swap_b32', vr(VD), vr(VT))
        a('v_rcp_f32', vr(VT), vr(VT))
        for r in range(12):
            a('v_mul_f32', vr(O + r), vr(O + r), vr(VT))
        for k in range(6):
            a('v_cvt_pk_bf16_f32', vr(P + k), vr(O + 2 * k), vr(O + 2 * k + 1))
        a('s_lshl_b32', 's43', 's28', 5)
        a('v_add_u32', vr(VD), 's43', 'v3')
        a('s_movk_i32', 's44', 1280)
        a('v_mul_lo_u32', vr(VD), vr(VD), 's44')
        a('v_lshl_add_u32', vr(VD), 'v4', 3, vr(VD))
        a('s_mul_i32', 's44', 's24', 40)
        a('s_add_u32', 's44', 's44', obase_sreg)
        a('buffer_store_dwordx2', vr(P, 2), vr(VD), 's[20:23]', 's44', mods='offen')
        a('buffer_store_dwordx2', vr(P + 2, 2), vr(VD), 's[20:23]', 's44', mods='offen offset:16')
        a('s_mov_b32', 'exec_hi', 0)
        a('buffer_store_dwordx2', vr(P + 4, 2), vr(VD), 's[20:23]', 's44', mods='offen offset:32')
        a('s_mov_b64', 'exec', -1)
        a.label(Ldone)

    a('s_mul_i32', 's46', 's24', HSZ_Q)
    a('s_mul_i32', 's47', 's28', REC_Q)
    a('s_add_u32', 's46', 's46', 's47')
    a('s_add_u32', 's46', 's46', Q_B)
    a('buffer_load_dwordx4', vr(Q0, 4), 'v5', 's[20:23]', 's46', mods='offen')
    a('v_subrev_u32', vr(VT2), 1024, 'v6')
    a('buffer_load_dword', vr(Q1), vr(VT2), 's[20:23]', 's46', mods='offen offset:1024')
    merge_epilogue('a', O_A, 0)
    stamp()
    a('v_lshlrev_b32', 'v10', 2, 'v4')
    a('v_sub_u32', 'v10', 'v3', 'v10')
    a('v_mov_b32', 'v11', hex(f32bits(-1e30)))
    a('s_sub_u32', 's44', 's28', 's35')
    a('s_mul_i32', 's45', 's44', REC_KV)
    a('s_add_u32', 's45', 's45', K2_BUF)
    a('v_add_u32', AK0, 's45', 'v5')
    a('v_add_u32', AK1, 's45', 'v6')
    a('v_add_u32', AV, 's45', 'v7')
    a('s_waitcnt', 'vmcnt(0)')
    Lb1 = 'k2_b1'; Lbm = 'k2_bm'; Lf = 'k2_bfull'; Lfe = 'k2_bfull_end'; Lempty = 'k2_bempty'
    def down(n=1):
        a('v_subrev_u32', AK0, n * REC_KV, AK0)
        a('v_subrev_u32', AK1, n * REC_KV, AK1)
        a('v_subrev_u32', AV, n * REC_KV, AV)
    a('s_cmp_lg_u32', 's33', 0)
    a('s_cbranch_scc1', Lb1)
    readsK(AK0, AK1); readsV(AV)
    a('s_waitcnt', 'lgkmcnt(0)')
    init_max(SB[0], 'diag')
    qk(SB[0]); check_now(SB[0], 'diag'); softmax_pv(SB[0])
    a('s_min_u32', 's46', 's28', 4)
    a('s_mov_b32', 's47', 0)
    a('s_branch', Lf)
    a.label(Lb1)
    a('s_cmp_lt_u32', 's28', 5)
    a('s_cbranch_scc1', Lempty)
    down(5)
    readsK(AK0, AK1); readsV(AV)
    a('s_waitcnt', 'lgkmcnt(0)')
    init_max(SB[0], None)
    qk(SB[0]); check_now(SB[0]); softmax_pv(SB[0])
    a('s_sub_u32', 's46', 's28', 5)
    a('s_min_u32', 's46', 's46', 2)
    a('s_cmp_ge_u32', 's28', 8)
    a('s_cselect_b32', 's47', 1, 0)
    a.label(Lf)
    a('s_cmp_eq_u32', 's46', 0)
    a('s_cbranch_scc1', Lfe)
    down()
    readsK(AK0, AK1); readsV(AV)
    a('s_waitcnt', 'lgkmcnt(2)')
    qk(SB[0]); check_now(SB[0])
    a('s_waitcnt', 'lgkmcnt(0)')
    softmax_pv(SB[0])
    a('s_sub_u32', 's46', 's46', 1)
    a('s_branch', Lf)
    a.label(Lfe)
    a('s_cmp_eq_u32', 's47', 0)
    a('s_cbranch_scc1', Lbm)
    down()
    readsK(AK0, AK1); readsV(AV)
    a('s_waitcnt', 'lgkmcnt(0)')
    qk(SB[0]); check_now(SB[0], 'edge'); softmax_pv(SB[0])
    a('s_branch', Lbm)
    a.label(Lempty)
    a('v_mov_b32', vr(VM), 'v11')
    for r in range(12):
        a('v_mov_b32', vr(O + r), 0)
    a.label(Lbm)
    merge_epilogue('b', O_B, 0)
    if 'stamp' in EXP:
        stamp()
        a('s_waitcnt', 'vmcnt(0) lgkmcnt(0)')
        a('s_cmp_lg_u32', 's27', 0)
        a('s_cbranch_scc1', Lexit)
        a('v_mov_b32', 'v4', 's70')
        a('v_mov_b32', 'v5', sr(70 + 2 * (nst[0] - 1)))
        a('v_mov_b32', 'v6', 0)
        a('v_mov_b32', 'v7', 0)
        a('s_lshl_b32', 's98', 's2', 4)
        a('s_add_u32', 's98', 's98', 0x2010000)
        a('v_mov_b32', 'v2', 0)
        a('buffer_store_dwordx4', 'v[4:7]', 'v2', 's[20:23]', 's98', mods='offen')
        a('s_cmp_lg_u32', 's2', 0)
        a('s_cbranch_scc1', Lexit)
        a('s_load_dwordx2', 's[60:61]', 's[0:1]', 64)
        a('s_waitcnt', 'lgkmcnt(0)')
        srd(a, 64, 60, 256)
        for i in range(nst[0]):
            a('v_mov_b32', 'v1', sr(70 + 2 * i))
            a('v_mov_b32', 'v2', 4 * i)
            a('buffer_store_dword', 'v1', 'v2', 's[64:67]', 0, mods='offen')
    a.label(Lexit)
    a('s_endpgm')
    return name, 128

K3_XROW = 272
K3_WROW = 160
K3_XSZ = 64 * K3_XROW
K3_WSZ = 128 * K3_WROW
K3_BUF = K3_XSZ + K3_WSZ
K3_LDS = 2 * K3_BUF

def gen_k3(a):
    name = 'oproj_kernel'; a.cur = 'k3'
    header(a, name)
    Lexit = 'k3_exit'
    a('s_cmp_ge_u32', 's2', 320)
    a('s_cbranch_scc1', Lexit)
    st = Stamps(a, kid=2)
    st()
    a('s_load_dwordx2', 's[4:5]', 's[0:1]', 16)
    a('s_load_dwordx2', 's[6:7]', 's[0:1]', 40)
    a('s_load_dwordx2', 's[8:9]', 's[0:1]', 56)
    a('s_load_dwordx2', 's[10:11]', 's[0:1]', 72)
    a('s_waitcnt', 'lgkmcnt(0)')
    srd(a, 12, 4, 640 * 640 * 2)
    srd(a, 16, 6, 640 * 640 * 2)
    srd(a, 20, 10, WS_SIZE)
    srd(a, 24, 8, 2048 * 640 * 2)
    a('s_and_b32', 's28', 's2', 31)
    a('s_lshr_b32', 's29', 's2', 5)
    a('v_lshrrev_b32', 'v1', 6, 'v0')
    a('v_readfirstlane_b32', 's30', 'v1')
    a('s_and_b32', 's31', 's30', 1)
    a('s_lshr_b32', 's32', 's30', 1)
    a('s_lshl_b32', 's33', 's28', 6)
    a('v_lshrrev_b32', 'v2', 4, 'v0')
    a('v_add_u32', 'v2', 's33', 'v2')
    a('s_movk_i32', 's34', 1280)
    a('v_mul_lo_u32', 'v2', 'v2', 's34')
    a('v_and_b32', 'v3', 15, 'v0')
    a('v_lshl_add_u32', 'v2', 'v3', 4, 'v2')
    a('v_lshrrev_b32', 'v3', 3, 'v0')
    a('v_mul_lo_u32', 'v3', 'v3', 's34')
    a('v_and_b32', 'v4', 7, 'v0')
    a('v_lshl_add_u32', 'v3', 'v4', 4, 'v3')
    a('s_lshl_b32', 's35', 's29', 7)
    a('v_add_u32', 'v3', 's35', 'v3')
    a('v_lshrrev_b32', 'v4', 4, 'v0')
    a('v_mul_u32_u24', 'v4', K3_XROW, 'v4')
    a('v_and_b32', 'v5', 15, 'v0')
    a('v_lshl_add_u32', 'v4', 'v5', 4, 'v4')
    a('v_add_u32', 'v5', K3_BUF, 'v4')
    a('v_lshrrev_b32', 'v6', 3, 'v0')
    a('v_mul_u32_u24', 'v6', K3_WROW, 'v6')
    a('v_and_b32', 'v7', 7, 'v0')
    a('v_lshl_add_u32', 'v6', 'v7', 4, 'v6')
    a('v_add_u32', 'v6', K3_XSZ, 'v6')
    a('v_add_u32', 'v7', K3_BUF, 'v6')
    a('v_and_b32', 'v12', 63, 'v0')
    a('v_and_b32', 'v13', 31, 'v12')
    a('v_lshrrev_b32', 'v14', 5, 'v12')
    a('s_lshl_b32', 's34', 's31', 5)
    a('v_add_u32', 'v8', 's34', 'v13')
    a('v_mul_u32_u24', 'v8', K3_XROW, 'v8')
    a('v_lshl_add_u32', 'v8', 'v14', 4, 'v8')
    a('v_add_u32', 'v9', K3_BUF, 'v8')
    a('v_and_b32', 'v15', 15, 'v12')
    a('v_lshrrev_b32', 'v10', 2, 'v15')
    a('v_lshl_add_u32', 'v10', 'v14', 3, 'v10')
    a('v_mul_u32_u24', 'v10', K3_WROW, 'v10')
    a('v_bfe_u32', 'v11', 'v12', 4, 1)
    a('v_lshlrev_b32', 'v11', 4, 'v11')
    a('v_and_b32', 'v15', 3, 'v15')
    a('v_lshl_add_u32', 'v11', 'v15', 2, 'v11')
    a('s_lshl_b32', 's34', 's32', 5)
    a('v_add_u32', 'v11', 's34', 'v11')
    a('v_lshl_add_u32', 'v10', 'v11', 1, 'v10')
    a('v_add_u32', 'v10', K3_XSZ, 'v10')
    a('v_add_u32', 'v11', K3_BUF, 'v10')
    ACC = (64, 80); ST0 = 96; FX = 16; FW = 32
    NPF = 3
    a('s_lshl_b32', 's34', 's31', 5)
    a('s_add_u32', 's34', 's34', 's33')
    a('v_add_u32', 'v48', 's34', 'v13')
    a('v_lshlrev_b32', 'v49', 2, 'v48')
    a('s_mov_b32', 's36', G_OFF)
    a('buffer_load_dword', 'v50', 'v49', 's[20:23]', 's36', mods='offen')
    for r in range(16):
        a('v_mov_b32', vr(ACC[0] + r), 0)
        a('v_mov_b32', vr(ACC[1] + r), 0)

    def issue_loads(rs):
        ST = ST0 + 32 * rs
        a('s_cmp_ge_u32', 's46', 5)
        cs(a, 's44', O_B - 5 * 256, O_A)
        a('s_cselect_b32', 's60', 's16', 's12')
        a('s_cselect_b32', 's61', 's17', 's13')
        a('s_cselect_b32', 's47', 5 * 128 * 1280, 0)
        a('s_lshl_b32', 's45', 's46', 8)
        a('s_add_u32', 's44', 's44', 's45')
        for i in range(4):
            a('buffer_load_dwordx4', vr(ST + 4 * i, 4), 'v2', 's[20:23]', 's44', mods='offen')
            if i < 3: a('s_add_u32', 's44', 's44', 16 * 1280)
        a('s_mul_i32', 's45', 's46', 128 * 1280)
        a('s_sub_u32', 's45', 's45', 's47')
        for i in range(4):
            a('buffer_load_dwordx4', vr(ST + 16 + 4 * i, 4), 'v3', 's[60:63]', 's45', mods='offen')
            if i < 3: a('s_add_u32', 's45', 's45', 32 * 1280)
        a('s_add_u32', 's46', 's46', 1)
    def write_lds(buf, rs):
        ST = ST0 + 32 * rs
        for i in range(4):
            a('ds_write_b128', 'v%d' % (4 + buf), vr(ST + 4 * i, 4), mods='offset:%d' % (i * 16 * K3_XROW))
        for i in range(4):
            a('ds_write_b128', 'v%d' % (6 + buf), vr(ST + 16 + 4 * i, 4), mods='offset:%d' % (i * 32 * K3_WROW))
    def frag_reads(buf, ks, st):
        a('ds_read_b128', vr(FX + st * 4, 4), 'v%d' % (8 + buf), mods='offset:%d' % (ks * 32))
        for hf in range(2):
            a('ds_read_b64_tr_b16', vr(FW + st * 4 + hf * 2, 2), 'v%d' % (10 + buf),
              mods='offset:%d' % (ks * 16 * K3_WROW + hf * 4 * K3_WROW))
    a('s_mov_b32', 's62', 640 * 640 * 2)
    a('s_mov_b32', 's63', '0x00020000')
    a('s_mov_b32', 's46', 0)
    issue_loads(0); issue_loads(1)
    a('s_waitcnt', 'vmcnt(8)')
    write_lds(0, 0)
    a('s_waitcnt', 'lgkmcnt(0)')
    a('s_barrier')
    NS = 4
    acc = vr(ACC[1], 16)
    def stage(buf, issue, last=False):
        if issue: issue_loads(buf)
        for ks in range(3): frag_reads(buf, ks, ks % NS)
        for ks in range(8):
            if ks + 3 < 8:
                frag_reads(buf, ks + 3, (ks + 3) % NS)
                a('s_waitcnt', 'lgkmcnt(9)')
            else:
                a('s_waitcnt', 'lgkmcnt(%d)' % (3 * (7 - ks)))
            a('v_mfma_f32_32x32x16_bf16', acc, vr(FW + (ks % NS) * 4, 4), vr(FX + (ks % NS) * 4, 4), acc)
        if not last:
            a('s_waitcnt', 'vmcnt(%d)' % (8 if issue else 0))
            write_lds(1 - buf, 1 - buf)
            a('s_waitcnt', 'lgkmcnt(0)')
            a('s_barrier')
    st()
    a('s_mov_b32', 's48', 0)
    L = 'k3_loop'
    a.label(L)
    stage(0, True)
    sk = 'k3_noswitch'
    a('s_cmp_lg_u32', 's48', 2)
    a('s_cbranch_scc1', sk)
    for r in range(16):
        a('v_mov_b32', vr(ACC[0] + r), vr(ACC[1] + r))
    for r in range(16):
        a('v_mov_b32', vr(ACC[1] + r), 0)
    a.label(sk)
    stage(1, True)
    a('s_add_u32', 's48', 's48', 1)
    a('s_cmp_lt_u32', 's48', 4)
    a('s_cbranch_scc1', L)
    stage(0, False); stage(1, False, last=True)
    st()
    a('v_sub_f32', 'v51', '1.0', 'v50')
    for r in range(16):
        a('v_mul_f32', vr(ACC[0] + r), 'v50', vr(ACC[0] + r))
        a('v_fmac_f32', vr(ACC[0] + r), 'v51', vr(ACC[1] + r))
    a('s_movk_i32', 's34', 1280)
    a('v_mul_lo_u32', 'v52', 'v48', 's34')
    a('v_lshl_add_u32', 'v52', 'v14', 3, 'v52')
    a('s_lshl_b32', 's34', 's29', 7)
    a('s_lshl_b32', 's35', 's32', 6)
    a('s_add_u32', 's34', 's34', 's35')
    for rg in range(4):
        a('v_cvt_pk_bf16_f32', vr(54 + 2 * rg), vr(ACC[0] + 4 * rg), vr(ACC[0] + 4 * rg + 1))
        a('v_cvt_pk_bf16_f32', vr(55 + 2 * rg), vr(ACC[0] + 4 * rg + 2), vr(ACC[0] + 4 * rg + 3))
        a('buffer_store_dwordx2', vr(54 + 2 * rg, 2), 'v52', 's[24:27]', 's34', mods='offen offset:%d' % (16 * rg))
    st.dump(0, 's30', Lexit)
    a.label(Lexit)
    a('s_endpgm')
    return name, 160

class FAsm(Asm):
    cur = ''
    def __call__(self, op, *ops, mods=''):
        for tok in EXP.split(','):
            if ':' in tok:
                k, pre = tok.split(':')
                if k == self.cur and op.startswith(pre): return
        Asm.__call__(self, op, *ops, mods=mods)

def main(out):
    a = FAsm()
    hdr = '''; gated mix of full attention and sliding-window attention  (generated by gen/gen.py)
; @launch kernel=qkv_kernel grid=(%d,1,1) block=(256,1,1) lds=%d
; @launch kernel=attn_kernel grid=(256,1,1) block=(1024,1,1) lds=%d
; @launch kernel=oproj_kernel grid=(320,1,1) block=(256,1,1) lds=%d
.amdgcn_target "amdgcn-amd-amdhsa--gfx950"
.text
''' % (K1_NWG + K1_GATE_WG, K1_LDS, K2_LDS, K3_LDS)
    ks = [gen_k1(a), gen_k2(a), gen_k3(a)]
    txt = hdr + a.text() + '.section .rodata,"a"\n' + ''.join(descriptor(n, v) for n, v in ks)
    open(out, 'w').write(txt)

if __name__ == '__main__':
    main(sys.argv[1] if len(sys.argv) > 1 else 'gated_mix__mha_block__sliding_block__prompt.s')
```

```python
import sys, os
EXP = os.environ.get('EXP', '')
sys.path.insert(0, 'gen')
from emit import Asm, vr, sr

REC_KV = 2624
HSZ_KV = 64 * REC_KV
REC_Q = 1280
HSZ_Q = 64 * REC_Q
KV_A, KV_B = 0x0, 0x600000
Q_A, Q_B = 0xC00000, 0xF00000
O_A, O_B = 0x1200000, 0x1500000
G_OFF = 0x1800000
WS_SIZE = 0x10000000
CSCALE = (20 ** -0.5) * 1.4426950408889634

def f32bits(x):
    import struct
    return struct.unpack('<I', struct.pack('<f', x))[0]

def srd(a, dst, ptr, size):
    a('s_mov_b32', sr(dst), sr(ptr))
    a('s_and_b32', sr(dst + 1), sr(ptr + 1), '0xffff')
    a('s_mov_b32', sr(dst + 2), hex(size))
    a('s_mov_b32', sr(dst + 3), '0x00020000')

def cs(a, dst, t, f):
    a('s_mov_b32', dst, f)
    a('s_cselect_b32', dst, t, dst)

class Stamps:
    def __init__(self, a, base=70, kid=0):
        self.a = a; self.n = 0; self.base = base; self.kid = kid
    def __call__(self):
        if 'stamp' in EXP:
            self.a('s_memrealtime', sr(self.base + 2 * self.n, 2)); self.n += 1
    def dump(self, wgid, wave_sreg, skip):
        a = self.a
        if 'stamp' not in EXP: return
        self()
        a('s_waitcnt', 'vmcnt(0) lgkmcnt(0)')
        a('s_mov_b64', 'exec', -1)
        a('s_cmp_lg_u32', wave_sreg, 0)
        a('s_cbranch_scc1', skip)
        a('s_getreg_b32', 's98', 'hwreg(HW_REG_HW_ID)')
        a('s_getreg_b32', 's99', 'hwreg(HW_REG_XCC_ID)')
        a('v_mov_b32', 'v4', sr(self.base))
        a('v_mov_b32', 'v5', sr(self.base + 2 * (self.n - 1)))
        a('v_mov_b32', 'v6', 's98')
        a('v_mov_b32', 'v7', 's99')
        a('s_lshl_b32', 's98', 's2', 4)
        a('s_add_u32', 's98', 's98', 0x2000000 + self.kid * 0x10000)
        a('v_mov_b32', 'v2', 0)
        a('buffer_store_dwordx4', 'v[4:7]', 'v2', 's[20:23]', 's98', mods='offen')
        a('s_cmp_lg_u32', 's2', wgid)
        a('s_cbranch_scc1', skip)
        a('s_load_dwordx2', 's[96:97]', 's[0:1]', 64)
        a('s_waitcnt', 'lgkmcnt(0)')
        srd(a, 92, 96, 256)
        for i in range(self.n):
            a('v_mov_b32', 'v1', sr(self.base + 2 * i))
            a('v_mov_b32', 'v2', 4 * i)
            a('buffer_store_dword', 'v1', 'v2', 's[92:95]', 0, mods='offen')

def header(a, name):
    a.raw('.globl %s' % name)
    a.raw('.p2align 8')
    a.raw('.type %s,@function' % name)
    a.raw('%s:' % name)
    a.hist = []

def descriptor(name, vgpr, sgpr=102):
    acc = (vgpr + 3) // 4 * 4
    return '''.p2align 6
.amdhsa_kernel %s
  .amdhsa_next_free_vgpr %d
  .amdhsa_next_free_sgpr %d
  .amdhsa_accum_offset %d
  .amdhsa_group_segment_fixed_size 0
  .amdhsa_kernarg_size 80
  .amdhsa_user_sgpr_count 2
  .amdhsa_user_sgpr_kernarg_segment_ptr 1
  .amdhsa_system_sgpr_workgroup_id_x 1
.end_amdhsa_kernel
''' % (name, vgpr, sgpr, acc)

K1_NWG = 480
K1_GATE_WG = 32
K1_BUF = 16384
K1_NB = 4
K1_LDS = K1_NB * K1_BUF

def gen_k1(a):
    name = 'qkv_kernel'; a.cur = 'k1'
    header(a, name)
    Lexit = 'k1_exit'; Lgate = 'k1_gate'
    a('s_cmp_ge_u32', 's2', K1_NWG + K1_GATE_WG)
    a('s_cbranch_scc1', Lexit)
    st = Stamps(a)
    st()
    a('s_load_dwordx2', 's[4:5]', 's[0:1]', 0)
    a('s_load_dwordx2', 's[6:7]', 's[0:1]', 8)
    a('s_load_dwordx2', 's[8:9]', 's[0:1]', 32)
    a('s_load_dwordx2', 's[10:11]', 's[0:1]', 72)
    a('s_load_dwordx2', 's[36:37]', 's[0:1]', 48)
    a('s_waitcnt', 'lgkmcnt(0)')
    srd(a, 12, 4, 2048 * 640 * 2)
    srd(a, 20, 10, WS_SIZE)
    a('s_cmp_ge_u32', 's2', K1_NWG)
    a('s_cbranch_scc1', Lgate)
    a('s_and_b32', 's24', 's2', 7)
    a('s_lshr_b32', 's25', 's2', 3)
    a('s_lshr_b32', 's26', 's24', 1)
    a('s_mul_i32', 's26', 's26', 60)
    a('s_add_u32', 's26', 's26', 's25')
    a('s_and_b32', 's24', 's24', 1)
    a('s_lshl_b32', 's24', 's24', 3)
    a('s_and_b32', 's27', 's26', 7)
    a('s_add_u32', 's24', 's24', 's27')
    a('s_lshr_b32', 's25', 's26', 3)
    a('s_mul_i32', 's26', 's25', 205)
    a('s_lshr_b32', 's26', 's26', 10)
    a('s_mul_i32', 's27', 's26', 5)
    a('s_sub_u32', 's27', 's25', 's27')
    a('s_lshl_b32', 's27', 's27', 7)
    a('s_cmp_ge_u32', 's26', 3)
    a('s_cselect_b32', 's6', 's8', 's6')
    a('s_cselect_b32', 's7', 's9', 's7')
    a('s_cselect_b32', 's31', 3, 0)
    a('s_sub_u32', 's31', 's26', 's31')
    srd(a, 16, 6, 640 * 1920 * 2)
    a('s_mul_i32', 's32', 's31', 640)
    a('s_add_u32', 's32', 's32', 's27')
    a('v_lshrrev_b32', 'v1', 6, 'v0')
    a('v_readfirstlane_b32', 's28', 'v1')
    a('s_and_b32', 's29', 's28', 1)
    a('s_lshr_b32', 's30', 's28', 1)
    a('v_and_b32', 'v12', 63, 'v0')
    a('v_and_b32', 'v13', 31, 'v12')
    a('v_lshrrev_b32', 'v14', 5, 'v12')
    a('v_lshrrev_b32', 'v4', 4, 'v12')
    a('v_lshrrev_b32', 'v2', 2, 'v12')
    a('s_movk_i32', 's34', 1280)
    a('v_mul_lo_u32', 'v2', 'v2', 's34')
    a('v_and_b32', 'v3', 3, 'v12')
    a('v_xor_b32', 'v3', 'v3', 'v4')
    a('v_lshl_add_u32', 'v2', 'v3', 4, 'v2')
    a('s_movk_i32', 's34', 3840)
    a('v_mul_lo_u32', 'v3', 'v4', 's34')
    a('v_and_b32', 'v5', 15, 'v12')
    a('v_lshlrev_b32', 'v6', 2, 'v4')
    a('v_xor_b32', 'v5', 'v5', 'v6')
    a('v_lshl_add_u32', 'v3', 'v5', 4, 'v3')
    a('s_lshl_b32', 's34', 's32', 1)
    a('v_add_u32', 'v3', 's34', 'v3')
    a('s_lshl_b32', 's33', 's24', 7)
    a('s_lshl_b32', 's34', 's28', 5)
    a('s_add_u32', 's34', 's34', 's33')
    a('s_mul_i32', 's40', 's34', 1280)
    a('s_add_u32', 's41', 's40', 16 * 1280)
    a('s_lshl_b32', 's34', 's28', 3)
    a('s_mul_i32', 's42', 's34', 3840)
    a('s_add_u32', 's43', 's42', 4 * 3840)
    a('s_lshl_b32', 's46', 's28', 11)
    a('s_lshl_b32', 's34', 's29', 6)
    a('v_add_u32', 'v8', 's34', 'v13')
    a('v_bfe_u32', 'v9', 'v8', 2, 2)
    a('v_xor_b32', 'v9', 'v9', 'v14')
    a('v_lshlrev_b32', 'v8', 6, 'v8')
    a('v_lshl_add_u32', 'v10', 'v9', 4, 'v8')
    a('v_xor_b32', 'v9', 2, 'v9')
    a('v_lshl_add_u32', 'v11', 'v9', 4, 'v8')
    a('v_mov_b32', 'v8', 'v10'); a('v_mov_b32', 'v9', 'v11')
    a('v_and_b32', 'v15', 15, 'v12')
    a('v_lshrrev_b32', 'v10', 2, 'v15')
    a('v_lshlrev_b32', 'v5', 6, 'v10')
    a('v_lshl_add_u32', 'v10', 'v14', 3, 'v10')
    a('v_lshlrev_b32', 'v10', 8, 'v10')
    a('v_bfe_u32', 'v11', 'v12', 4, 1)
    a('v_lshlrev_b32', 'v11', 5, 'v11')
    a('v_and_b32', 'v15', 3, 'v15')
    a('v_lshl_add_u32', 'v11', 'v15', 3, 'v11')
    a('s_lshl_b32', 's34', 's30', 7)
    a('v_add_u32', 'v11', 's34', 'v11')
    a('v_xor_b32', 'v6', 'v11', 'v5')
    a('v_add_u32', 'v6', 'v6', 'v10')
    a('v_add_u32', 'v6', 8192, 'v6')
    a('v_add_u32', 'v11', 64, 'v11')
    a('v_xor_b32', 'v7', 'v11', 'v5')
    a('v_add_u32', 'v7', 'v7', 'v10')
    a('v_add_u32', 'v7', 8192, 'v7')
    ACC = 64; FX = 16; FW = 32

    def issue_dma(buf):
        base = buf * K1_BUF
        for j in range(2):
            a('s_add_u32', 'm0', 's46', base + j * 1024)
            a('s_nop', 0)
            a('buffer_load_dwordx4', 'v2', 's[12:15]', sr(40 + j), mods='offen lds')
        for j in range(2):
            a('s_add_u32', 'm0', 's46', base + 8192 + j * 1024)
            a('s_nop', 0)
            a('buffer_load_dwordx4', 'v3', 's[16:19]', sr(42 + j), mods='offen lds')
        for j in range(2):
            a('s_add_u32', sr(40 + j), sr(40 + j), 64)
            a('s_add_u32', sr(42 + j), sr(42 + j), 32 * 3840)
    def frag_reads(buf, fs):
        base = buf * K1_BUF
        F = FR[fs]
        for ks in range(2):
            for bi in range(2):
                a('ds_read_b128', vr(F + ks * 16 + bi * 4, 4), 'v%d' % (8 + ks), mods='offset:%d' % (base + bi * 2048))
            for bj in range(2):
                for hf in range(2):
                    a('ds_read_b64_tr_b16', vr(F + ks * 16 + 8 + bj * 4 + hf * 2, 2), 'v%d' % (6 + bj),
                      mods='offset:%d' % (base + ks * 4096 + hf * 1024))
    FR = (128, 160)

    def mainloop(vorient, tag):
        for r in range(64):
            a('v_mov_b32', vr(ACC + r), 0)
        for b in range(3): issue_dma(b)
        a('s_waitcnt', 'vmcnt(4)')
        a('s_barrier')
        frag_reads(0, 0)
        def stage(buf):
            fs = buf % 2
            issue_dma((buf + 3) % 4)
            a('s_waitcnt', 'lgkmcnt(0)')
            frag_reads((buf + 1) % 4, 1 - fs)
            F = FR[fs]
            for ks in range(2):
                for bi in range(2):
                    for bj in range(2):
                        acc = vr(ACC + (bi * 2 + bj) * 16, 16)
                        xf = vr(F + ks * 16 + bi * 4, 4); wf = vr(F + ks * 16 + 8 + bj * 4, 4)
                        if vorient: a('v_mfma_f32_32x32x16_bf16', acc, xf, wf, acc)
                        else: a('v_mfma_f32_32x32x16_bf16', acc, wf, xf, acc)
            a('s_waitcnt', 'vmcnt(4)')
            a('s_barrier')
        if tag == 'qk': st()
        a('s_mov_b32', 's45', 0)
        L = 'k1_loop_' + tag
        a.label(L)
        for b in range(4): stage(b)
        a('s_add_u32', 's45', 's45', 1)
        a('s_cmp_lt_u32', 's45', 5)
        a('s_cbranch_scc1', L)
        a('s_waitcnt', 'vmcnt(0) lgkmcnt(0)')

    Lv = 'k1_vpath'
    a('s_cmp_eq_u32', 's31', 2)
    a('s_cbranch_scc1', Lv)
    mainloop(False, 'qk')
    st()
    a('s_cmp_eq_u32', 's31', 0)
    cs(a, 's45', hex(f32bits(CSCALE)), hex(f32bits(1.0)))
    for r in range(64):
        a('v_mul_f32', vr(ACC + r), 's45', vr(ACC + r))
    cs(a, 's46', HSZ_Q, HSZ_KV)
    cs(a, 's47', REC_Q, REC_KV)
    a('s_cmp_ge_u32', 's26', 3)
    cs(a, 's48', Q_B, Q_A)
    cs(a, 's49', KV_B, KV_A)
    a('s_cmp_eq_u32', 's31', 0)
    a('s_cselect_b32', 's48', 's48', 's49')
    a('s_lshl_b32', 's49', 's24', 2)
    a('s_lshl_b32', 's50', 's29', 1)
    a('s_add_u32', 's49', 's49', 's50')
    a('s_mul_i32', 's49', 's49', 's47')
    a('s_add_u32', 's48', 's48', 's49')
    a('s_add_u32', 's49', 's48', 's47')
    a('s_mov_b64', 's[52:53]', -1)
    a('s_mov_b32', 's52', 0)
    a('s_mov_b64', 's[54:55]', -1)
    a('s_mov_b32', 's55', 0)
    a('s_lshr_b32', 's50', 's27', 2)
    a('s_lshl_b32', 's51', 's30', 4)
    a('s_add_u32', 's50', 's50', 's51')
    T = 48
    for bj in range(2):
        for rg in range(4):
            for h in range(2):
                o = 60 + 3 * h
                a('s_add_u32', 's56', 's50', bj * 8 + 2 * rg + h)
                a('s_mul_i32', 's57', 's56', 205)
                a('s_lshr_b32', 's57', 's57', 10)
                a('s_mul_i32', 's58', 's57', 5)
                a('s_sub_u32', sr(o + 2), 's56', 's58')
                a('s_mul_i32', 's57', 's57', 's46')
                a('s_lshr_b32', 's58', sr(o + 2), 1)
                a('s_lshl_b32', 's58', 's58', 9)
                a('s_and_b32', 's59', sr(o + 2), 1)
                a('s_lshl_b32', 's59', 's59', 3)
                a('s_add_u32', sr(o), 's57', 's58')
                a('s_add_u32', sr(o), sr(o), 's59')
                a('s_add_u32', sr(o + 1), 's57', 1024)
            a('s_mov_b64', 's[66:67]', -1)
            a('s_cmp_eq_u32', 's62', 4)
            a('s_cselect_b64', 's[66:67]', 's[52:53]', 's[66:67]')
            a('s_cmp_eq_u32', 's65', 4)
            a('s_cselect_b64', 's[66:67]', 's[54:55]', 's[66:67]')
            a('v_mov_b32', vr(T), 's60')
            a('v_mov_b32', vr(T + 1), 's63')
            a('v_cndmask_b32', vr(T), vr(T), vr(T + 1), 's[52:53]')
            a('v_lshl_add_u32', vr(T), 'v13', 4, vr(T))
            a('v_mov_b32', vr(T + 2), 's61')
            a('v_mov_b32', vr(T + 1), 's64')
            a('v_cndmask_b32', vr(T + 2), vr(T + 2), vr(T + 1), 's[52:53]')
            a('v_lshl_add_u32', vr(T + 2), 'v13', 2, vr(T + 2))
            for bi in range(2):
                base = ACC + (bi * 2 + bj) * 16 + rg * 4
                a('v_cvt_pk_bf16_f32', vr(T + 4 + bi * 2), vr(base), vr(base + 1))
                a('v_cvt_pk_bf16_f32', vr(T + 5 + bi * 2), vr(base + 2), vr(base + 3))
            a('s_mov_b64', 'exec', 's[66:67]')
            for bi in range(2):
                a('buffer_store_dwordx2', vr(T + 4 + bi * 2, 2), vr(T), 's[20:23]', sr(48 + bi), mods='offen')
            skip = a.newlabel('k1_s')
            a('s_andn2_b64', 'exec', -1, 's[66:67]')
            a('s_cbranch_scc0', skip)
            for bi in range(2):
                a('buffer_store_dword', vr(T + 4 + bi * 2), vr(T + 2), 's[20:23]', sr(48 + bi), mods='offen')
                a('buffer_store_dword', vr(T + 5 + bi * 2), vr(T + 2), 's[20:23]', sr(48 + bi), mods='offen offset:128')
            a.label(skip)
            a('s_mov_b64', 'exec', -1)
    st.dump(0, 's28', Lexit)
    a('s_branch', Lexit)
    a.label(Lv)
    mainloop(True, 'v')
    a('s_cmp_ge_u32', 's26', 3)
    cs(a, 's48', KV_B, KV_A)
    a('s_lshl_b32', 's49', 's24', 2)
    a('s_lshl_b32', 's50', 's29', 1)
    a('s_add_u32', 's49', 's49', 's50')
    a('s_mul_i32', 's49', 's49', REC_KV)
    a('s_add_u32', 's48', 's48', 's49')
    a('s_add_u32', 's49', 's48', REC_KV)
    T = 48
    for k in range(4):
        a('v_mov_b32', vr(T + 8 + k), '0x3f803f80')
    for bj in range(2):
        a('s_lshl_b32', 's50', 's30', 6)
        a('s_add_u32', 's50', 's50', 's27')
        a('s_add_u32', 's50', 's50', bj * 32)
        a('v_add_u32', vr(T), 's50', 'v13')
        a('v_mul_u32_u24', vr(T + 1), 3277, vr(T))
        a('v_lshrrev_b32', vr(T + 1), 16, vr(T + 1))
        a('v_mul_u32_u24', vr(T + 2), 20, vr(T + 1))
        a('v_sub_u32', vr(T + 2), vr(T), vr(T + 2))
        a('s_mov_b32', 's51', HSZ_KV)
        a('v_mul_lo_u32', vr(T + 1), vr(T + 1), 's51')
        a('v_lshl_add_u32', vr(T + 1), vr(T + 2), 4, vr(T + 1))
        a('v_mul_u32_u24', vr(T + 3), 336, 'v14')
        a('v_add_u32', vr(T + 1), vr(T + 1), vr(T + 3))
        a('v_add_u32', vr(T + 1), 1280, vr(T + 1))
        a('v_cmp_eq_u32', 's[56:57]', 0, vr(T + 2))
        for bi in range(2):
            base = ACC + (bi * 2 + bj) * 16
            for c in range(2):
                for k in range(4):
                    a('v_cvt_pk_bf16_f32', vr(T + 4 + k), vr(base + c * 8 + 2 * k), vr(base + c * 8 + 2 * k + 1))
                a('buffer_store_dwordx4', vr(T + 4, 4), vr(T + 1), 's[20:23]', sr(48 + bi), mods='offen offset:%d' % (c * 672))
        skip = a.newlabel('k1_v')
        a('s_and_b64', 'exec', 's[56:57]', 's[56:57]')
        a('s_cbranch_scc0', skip)
        for bi in range(2):
            for c in range(2):
                a('buffer_store_dwordx4', vr(T + 8, 4), vr(T + 1), 's[20:23]', sr(48 + bi), mods='offen offset:%d' % (c * 672 + 320))
        a.label(skip)
        a('s_mov_b64', 'exec', -1)
    st.n = 3
    st.dump(9999, 's28', Lexit)
    a('s_branch', Lexit)
    a.label(Lgate)
    srd(a, 16, 36, 640 * 2)
    a('s_sub_u32', 's24', 's2', K1_NWG)
    a('v_lshrrev_b32', 'v1', 2, 'v0')
    a('s_lshl_b32', 's25', 's24', 6)
    a('v_add_u32', 'v1', 's25', 'v1')
    a('v_and_b32', 'v2', 3, 'v0')
    a('v_mul_u32_u24', 'v2', 320, 'v2')
    a('s_mov_b32', 's26', 1280)
    a('v_mul_lo_u32', 'v3', 'v1', 's26')
    a('v_add_u32', 'v3', 'v3', 'v2')
    for i in range(20):
        a('buffer_load_dwordx4', vr(16 + 4 * i, 4), 'v3', 's[12:15]', 0, mods='offen offset:%d' % (16 * i))
    for i in range(20):
        a('buffer_load_dwordx4', vr(96 + 4 * i, 4), 'v2', 's[16:19]', 0, mods='offen offset:%d' % (16 * i))
    a('v_mov_b32', 'v4', 0)
    a('v_mov_b32', 'v5', 0)
    a('s_waitcnt', 'vmcnt(0)')
    for i in range(80):
        a('v_lshlrev_b32', 'v6', 16, vr(16 + i))
        a('v_lshlrev_b32', 'v7', 16, vr(96 + i))
        a('v_fmac_f32', 'v4', 'v6', 'v7')
        a('v_and_b32', 'v8', '0xffff0000', vr(16 + i))
        a('v_and_b32', 'v9', '0xffff0000', vr(96 + i))
        a('v_fmac_f32', 'v5', 'v8', 'v9')
    a('v_add_f32', 'v4', 'v4', 'v5')
    for off in ('0x041F', '0x081F'):
        a('ds_swizzle_b32', 'v5', 'v4', mods='offset:%s' % off)
        a('s_waitcnt', 'lgkmcnt(0)')
        a('v_add_f32', 'v4', 'v4', 'v5')
    a('v_mul_f32', 'v4', hex(f32bits(-1.4426950408889634)), 'v4')
    a('v_exp_f32', 'v4', 'v4')
    a('v_add_f32', 'v4', '1.0', 'v4')
    a('v_rcp_f32', 'v4', 'v4')
    a('v_lshlrev_b32', 'v5', 2, 'v1')
    a('v_and_b32', 'v6', 3, 'v0')
    a('v_cmp_eq_u32', 'vcc', 0, 'v6')
    a('s_and_b64', 'exec', 'vcc', 'vcc')
    a('s_mov_b32', 's27', G_OFF)
    a('buffer_store_dword', 'v4', 'v5', 's[20:23]', 's27', mods='offen')
    a.label(Lexit)
    a('s_endpgm')
    return name, 192

K2_BUF = 49152
K2_LDS = 3 * K2_BUF
K2_NWG = 256
TMAX = float(os.environ.get('TMAX', '64.0'))

def gen_k2(a):
    name = 'attn_kernel'; a.cur = 'k2'
    header(a, name)
    Lexit = 'k2_exit'; LB = 'k2_bpath'; Lepi = 'k2_epi'; Lmerge = 'k2_merge'
    Q0 = 16; Q1 = 20; BIAS = 24; SB = (40, 56); P = 72; O = 80; K0 = 96; K1 = 100; V = 104; ST = 112
    AK0 = 'v124'; AK1 = 'v125'; AV = 'v126'; AW = 'v127'
    BK0 = 'v10'; BK1 = 'v11'; BV = 'v8'
    VM = 12; VTM = 13; VD = 14; VT = 15; VT2 = 1
    TS = 2 * REC_KV
    nst = [0]
    def stamp():
        if 'stamp' in EXP:
            a('s_memrealtime', sr(70 + 2 * nst[0], 2)); nst[0] += 1
    a('s_cmp_ge_u32', 's2', 256 if 'noB' in EXP else K2_NWG)
    a('s_cbranch_scc1', Lexit)
    stamp()
    a('s_load_dwordx2', 's[10:11]', 's[0:1]', 72)
    a('s_waitcnt', 'lgkmcnt(0)')
    srd(a, 20, 10, WS_SIZE)
    a('s_and_b32', 's24', 's2', 31)
    a('s_lshr_b32', 's25', 's2', 5)
    a('v_lshrrev_b32', 'v1', 6, 'v0')
    a('v_readfirstlane_b32', 's27', 'v1')
    a('s_cmp_ge_u32', 's25', 8)
    a('s_cselect_b32', 's26', 1, 0)
    a('s_lshr_b32', 's33', 's27', 3)
    a('s_and_b32', 's34', 's27', 7)
    a('s_lshl_b32', 's28', 's25', 3)
    a('s_add_u32', 's28', 's28', 's34')
    a('s_sub_u32', 's35', 's25', 8)
    a('s_lshl_b32', 's35', 's35', 4)
    a('s_add_u32', 's36', 's35', 's27')
    a('s_cmp_eq_u32', 's26', 0)
    a('s_cselect_b32', 's28', 's28', 's36')
    cs(a, 's29', KV_A, KV_B)
    cs(a, 's30', Q_A, Q_B)
    cs(a, 's31', O_A, O_B)
    a('s_mul_i32', 's32', 's24', HSZ_KV)
    a('s_add_u32', 's29', 's29', 's32')
    a('s_mul_i32', 's32', 's24', HSZ_Q)
    a('s_add_u32', 's30', 's30', 's32')
    a('s_mul_i32', 's32', 's28', REC_Q)
    a('s_add_u32', 's30', 's30', 's32')
    a('v_and_b32', 'v2', 63, 'v0')
    a('v_and_b32', 'v3', 31, 'v2')
    a('v_lshrrev_b32', 'v4', 5, 'v2')
    a('v_lshlrev_b32', 'v5', 4, 'v2')
    a('v_lshlrev_b32', 'v6', 2, 'v2')
    a('buffer_load_dwordx4', vr(Q0, 4), 'v5', 's[20:23]', 's30', mods='offen')
    a('buffer_load_dword', vr(Q1), 'v6', 's[20:23]', 's30', mods='offen offset:1024')
    for k in range(1, 4):
        a('v_mov_b32', vr(Q1 + k), 0)
        a('v_mov_b32', vr(K1 + k), 0)
    a('v_add_u32', 'v6', 1024, 'v6')
    a('v_min_u32', 'v7', 20, 'v3')
    a('v_subrev_u32', 'v8', 24, 'v3')
    a('v_cmp_le_u32', 'vcc', 28, 'v3')
    a('v_cndmask_b32', 'v7', 'v7', 'v8', 'vcc')
    a('v_lshlrev_b32', 'v7', 4, 'v7')
    a('v_mul_u32_u24', 'v8', 336, 'v4')
    a('v_add_u32', 'v7', 'v7', 'v8')
    a('v_add_u32', 'v7', 1280, 'v7')
    a('v_lshlrev_b32', 'v9', 4, 'v0')
    a('s_mov_b32', 's40', hex(f32bits(TMAX)))

    def stage_issue(soff, n, r0=0):
        for i in range(n):
            if i == 0: a('s_mov_b32', 's41', soff)
            else: a('s_add_u32', 's41', 's41', 16384)
            a('buffer_load_dwordx4', vr(ST + 4 * ((r0 + i) % 3), 4), 'v9', 's[20:23]', 's41', mods='offen')
    def stage_write(vaddr, n=3, off=0):
        for i in range(n):
            a('ds_write_b128', vaddr, vr(ST + 4 * i, 4), mods='offset:%d' % (off + i * 16384))
    def readsK(ak0, ak1, off=0):
        a('ds_read_b128', vr(K0, 4), ak0, mods='offset:%d' % off)
        a('ds_read_b32', vr(K1), ak1, mods='offset:%d' % off)
    def readsV(av, off=0):
        a('ds_read_b128', vr(V, 4), av, mods='offset:%d' % off)
        a('ds_read_b128', vr(V + 4, 4), av, mods='offset:%d' % (off + 672))
    def tree_ops(S):
        m3 = lambda d, x, y, z: (lambda: a('v_max3_f32', vr(d), vr(x), vr(y), vr(z)))
        T5 = 8
        ops = [m3(VTM, S, S + 1, S + 2), m3(VD, S + 3, S + 4, S + 5), m3(VT, S + 6, S + 7, S + 8),
               m3(VT2, S + 9, S + 10, S + 11),
               m3(VTM, VTM, S + 12, S + 13), m3(VD, VD, S + 14, S + 15),
               m3(VT, VT, VT2, VTM),
               (lambda: a('v_max_f32', vr(VTM), vr(VT), vr(VD)))]
        return ops
    def crosshalf():
        a('v_mov_b32', vr(VD), vr(VTM))
        a('v_permlane32_swap_b32', vr(VD), vr(VTM))
        a('v_max_f32', vr(VTM), vr(VTM), vr(VD))
    def mask(S, kind):
        for r in range(16):
            cst = 8 * (r >> 2) + (r & 3)
            if kind == 'diag': a('v_cmp_le_i32', 'vcc', cst, 'v10')
            else: a('v_cmp_gt_i32', 'vcc', cst, 'v10')
            a('v_cndmask_b32', vr(S + r), 'v11', vr(S + r), 'vcc')
    def qk(S, c=None):
        a('v_mfma_f32_32x32x16_bf16', vr(S, 16), vr(K0, 4), vr(Q0, 4), vr(BIAS, 16) if c is None else c)
        a('v_mfma_f32_32x32x16_bf16', vr(S, 16), vr(K1, 4), vr(Q1, 4), vr(S, 16))
    def pv():
        a('v_mfma_f32_32x32x16_bf16', vr(O, 16), vr(V, 4), vr(P, 4), vr(O, 16))
        a('v_mfma_f32_32x32x16_bf16', vr(O, 16), vr(V + 4, 4), vr(P + 4, 4), vr(O, 16))
    def rare(S):
        skip = a.newlabel('k2_f')
        a.cbranch_keep('s_cbranch_vccz', skip)
        crosshalf()
        a('v_max_f32', vr(VD), 0, vr(VTM))
        a('v_add_f32', vr(VM), vr(VM), vr(VD))
        a('v_sub_f32', vr(VT), 0, vr(VD))
        a('v_exp_f32', vr(VT), vr(VT))
        for r in range(16):
            a('v_sub_f32', vr(S + r), vr(S + r), vr(VD))
            a('v_sub_f32', vr(BIAS + r), vr(BIAS + r), vr(VD))
            a('v_mul_f32', vr(O + r), vr(O + r), vr(VT))
        a.label_keep(skip)
    def init_max(S, kind):
        qk(S, 0)
        if kind: mask(S, kind)
        for f in tree_ops(S): f()
        crosshalf()
        a('v_mov_b32', vr(VM), vr(VTM))
        for r in range(16):
            a('v_sub_f32', vr(BIAS + r), 0, vr(VTM))
            a('v_mov_b32', vr(O + r), 0)
    def check_now(S, kind=None):
        if kind: mask(S, kind)
        for f in tree_ops(S): f()
        a('v_cmp_lt_f32', 'vcc', 's40', vr(VTM))
        rare(S)
    def softmax_pv(S):
        for r in range(16):
            a('v_exp_f32', vr(S + r), vr(S + r))
        for k in range(8):
            a('v_cvt_pk_bf16_f32', vr(P + k), vr(S + 2 * k), vr(S + 2 * k + 1))
        pv()

    def pstep(cur, nxt, kread, vread, do_next, xw=0, post=None):
        Sc = SB[cur]; Sn = SB[nxt]
        ex = lambda r: a('v_exp_f32', vr(Sc + r), vr(Sc + r))
        cv = lambda k: a('v_cvt_pk_bf16_f32', vr(P + k), vr(Sc + 2 * k), vr(Sc + 2 * k + 1))
        if do_next:
            a('s_waitcnt', 'lgkmcnt(%d)' % (2 + xw))
            a('v_mfma_f32_32x32x16_bf16', vr(Sn, 16), vr(K0, 4), vr(Q0, 4), vr(BIAS, 16))
        for r in range(0, 4): ex(r)
        if do_next:
            a('v_mfma_f32_32x32x16_bf16', vr(Sn, 16), vr(K1, 4), vr(Q1, 4), vr(Sn, 16))
            if kread: readsK(*kread)
        for r in range(4, 8): ex(r)
        for k in range(4): cv(k)
        a('s_waitcnt', 'lgkmcnt(%d)' % (((2 if kread else 0) + xw) if do_next else 0))
        a('v_mfma_f32_32x32x16_bf16', vr(O, 16), vr(V, 4), vr(P, 4), vr(O, 16))
        tr = tree_ops(Sn) if do_next else []
        for i in range(8):
            ex(8 + i)
            if i < len(tr): tr[i]()
        for k in range(4, 8):
            cv(k)
        if do_next:
            a('v_cmp_lt_f32', 'vcc', 's40', vr(VTM))
        a('v_mfma_f32_32x32x16_bf16', vr(O, 16), vr(V + 4, 4), vr(P + 4, 4), vr(O, 16))
        if do_next:
            if vread: readsV(*vread)
            rare(Sn)
        if post: post()

    if 'prio' in EXP:
        a('s_cmp_eq_u32', 's33', 0)
        a('s_cbranch_scc1', 'k2_noprio')
        a('s_setprio', 1)
        a.label('k2_noprio')
    stage_issue('s29', 3)
    a('s_mul_i32', 's37', 's33', REC_KV)
    a('v_add_u32', AK0, 's37', 'v5'); a('v_add_u32', AK1, 's37', 'v6'); a('v_add_u32', AV, 's37', 'v7')
    a('v_add_u32', BK0, K2_BUF, AK0); a('v_add_u32', BK1, K2_BUF, AK1); a('v_add_u32', BV, K2_BUF, AV)
    a('s_waitcnt', 'vmcnt(0)')
    stage_write('v9')
    a('s_waitcnt', 'lgkmcnt(0)')
    a('s_barrier')
    stamp()
    readsK(AK0, AK1, 0)
    a('s_waitcnt', 'lgkmcnt(0)')
    init_max(SB[0], None)
    qk(SB[0])
    readsK(AK0, AK1, TS)
    readsV(AV, 0)
    check_now(SB[0])
    stamp()
    a('s_mov_b32', 's42', 0)
    a('s_mov_b32', 's43', 1)
    a('s_lshl_b32', 's35', 's25', 3)
    a('s_max_i32', 's35', 's35', 8)
    a('s_sub_u32', 's35', 's35', 8)
    a('s_mul_i32', 's36', 's35', REC_KV)
    a('s_mul_i32', 's38', 's24', HSZ_KV)
    a('s_add_u32', 's36', 's36', 's38')
    a('s_add_u32', 's36', 's36', KV_B)
    def chunk(last):
        if not last:
            a('s_add_u32', 's44', 's42', 1)
            a('s_mul_i32', 's44', 's44', 16 * REC_KV)
            a('s_add_u32', 's44', 's44', 's29')
            stage_issue('s44', 3)
        else:
            stage_issue('s36', 3)
        a('s_mul_i32', 's45', 's43', K2_BUF)
        a('v_add_u32', AW, 's45', 'v9')
        def wr():
            a('s_waitcnt', 'vmcnt(0)')
            stage_write(AW)
        for j in range(8):
            cur = j % 2
            if j == 6 and not last:
                a('s_barrier')
            fin = last and j == 7
            if j <= 5: kr = (AK0, AK1, (j + 2) * TS)
            else: kr = None if last else (BK0, BK1, (j - 6) * TS)
            if j <= 6: vrd = (AV, (j + 1) * TS)
            else: vrd = None if last else (BV, 0)
            pstep(cur, 1 - cur, kr, vrd, not fin, xw=(3 if j == 4 else 0),
                  post=(wr if j == 3 else None))
    Lc = 'k2_chunk'
    a.label(Lc)
    chunk(False)
    a('v_mov_b32', AK0, BK0); a('v_mov_b32', AK1, BK1); a('v_mov_b32', AV, BV)
    a('s_add_u32', 's42', 's42', 1)
    a('s_add_u32', 's43', 's43', 1)
    a('s_cmp_ge_u32', 's43', 3)
    a('s_cselect_b32', 's43', 0, 's43')
    a('s_mul_i32', 's45', 's43', K2_BUF)
    a('s_add_u32', 's45', 's45', 's37')
    a('v_add_u32', BK0, 's45', 'v5'); a('v_add_u32', BK1, 's45', 'v6'); a('v_add_u32', BV, 's45', 'v7')
    a('s_cmp_lt_u32', 's42', 3)
    a('s_cbranch_scc1', Lc)
    stamp()
    chunk(True)
    stamp()

    def merge_epilogue(tag, obase_sreg, lds_off):
        Lg0 = 'k2_g0_' + tag; Ldone = 'k2_md_' + tag
        a('s_barrier')
        a('s_and_b32', 's44', 's27', 7)
        a('s_mul_i32', 's44', 's44', 13 * 256)
        a('s_add_u32', 's44', 's44', lds_off)
        a('v_lshlrev_b32', vr(VD), 2, 'v2')
        a('v_add_u32', vr(VD), 's44', vr(VD))
        a('s_cmp_eq_u32', 's33', 0)
        a('s_cbranch_scc1', Lg0)
        for r in range(12):
            a('ds_write_b32', vr(VD), vr(O + r), mods='offset:%d' % (r * 256))
        a('ds_write_b32', vr(VD), vr(VM), mods='offset:%d' % (12 * 256))
        a('s_waitcnt', 'lgkmcnt(0)')
        a('s_barrier')
        a('s_branch', Ldone)
        a.label(Lg0)
        a('s_barrier')
        for r in range(12):
            a('ds_read_b32', vr(SB[0] + r), vr(VD), mods='offset:%d' % (r * 256))
        a('ds_read_b32', vr(SB[0] + 12), vr(VD), mods='offset:%d' % (12 * 256))
        a('s_waitcnt', 'lgkmcnt(0)')
        a('v_max_f32', vr(VT), vr(VM), vr(SB[0] + 12))
        a('v_sub_f32', vr(VTM), vr(VM), vr(VT))
        a('v_sub_f32', vr(VT2), vr(SB[0] + 12), vr(VT))
        a('v_exp_f32', vr(VTM), vr(VTM))
        a('v_exp_f32', vr(VT2), vr(VT2))
        for r in range(12):
            a('v_mul_f32', vr(O + r), vr(O + r), vr(VTM))
            a('v_fmac_f32', vr(O + r), vr(SB[0] + r), vr(VT2))
        a('v_mov_b32', vr(VD), vr(O + 8))
        a('v_mov_b32', vr(VT), vr(O + 8))
        a('v_permlane32_swap_b32', vr(VD), vr(VT))
        a('v_rcp_f32', vr(VT), vr(VT))
        for r in range(12):
            a('v_mul_f32', vr(O + r), vr(O + r), vr(VT))
        for k in range(6):
            a('v_cvt_pk_bf16_f32', vr(P + k), vr(O + 2 * k), vr(O + 2 * k + 1))
        a('s_lshl_b32', 's43', 's28', 5)
        a('v_add_u32', vr(VD), 's43', 'v3')
        a('s_movk_i32', 's44', 1280)
        a('v_mul_lo_u32', vr(VD), vr(VD), 's44')
        a('v_lshl_add_u32', vr(VD), 'v4', 3, vr(VD))
        a('s_mul_i32', 's44', 's24', 40)
        a('s_add_u32', 's44', 's44', obase_sreg)
        a('buffer_store_dwordx2', vr(P, 2), vr(VD), 's[20:23]', 's44', mods='offen')
        a('buffer_store_dwordx2', vr(P + 2, 2), vr(VD), 's[20:23]', 's44', mods='offen offset:16')
        a('s_mov_b32', 'exec_hi', 0)
        a('buffer_store_dwordx2', vr(P + 4, 2), vr(VD), 's[20:23]', 's44', mods='offen offset:32')
        a('s_mov_b64', 'exec', -1)
        a.label(Ldone)

    a('s_mul_i32', 's46', 's24', HSZ_Q)
    a('s_mul_i32', 's47', 's28', REC_Q)
    a('s_add_u32', 's46', 's46', 's47')
    a('s_add_u32', 's46', 's46', Q_B)
    a('buffer_load_dwordx4', vr(Q0, 4), 'v5', 's[20:23]', 's46', mods='offen')
    a('v_subrev_u32', vr(VT2), 1024, 'v6')
    a('buffer_load_dword', vr(Q1), vr(VT2), 's[20:23]', 's46', mods='offen offset:1024')
    merge_epilogue('a', O_A, 0)
    stamp()
    a('v_lshlrev_b32', 'v10', 2, 'v4')
    a('v_sub_u32', 'v10', 'v3', 'v10')
    a('v_mov_b32', 'v11', hex(f32bits(-1e30)))
    a('s_sub_u32', 's44', 's28', 's35')
    a('s_mul_i32', 's45', 's44', REC_KV)
    a('s_add_u32', 's45', 's45', K2_BUF)
    a('v_add_u32', AK0, 's45', 'v5')
    a('v_add_u32', AK1, 's45', 'v6')
    a('v_add_u32', AV, 's45', 'v7')
    a('s_waitcnt', 'vmcnt(0)')
    Lb1 = 'k2_b1'; Lbm = 'k2_bm'; Lf = 'k2_bfull'; Lfe = 'k2_bfull_end'; Lempty = 'k2_bempty'
    def down(n=1):
        a('v_subrev_u32', AK0, n * REC_KV, AK0)
        a('v_subrev_u32', AK1, n * REC_KV, AK1)
        a('v_subrev_u32', AV, n * REC_KV, AV)
    a('s_cmp_lg_u32', 's33', 0)
    a('s_cbranch_scc1', Lb1)
    readsK(AK0, AK1); readsV(AV)
    a('s_waitcnt', 'lgkmcnt(0)')
    init_max(SB[0], 'diag')
    qk(SB[0]); check_now(SB[0], 'diag'); softmax_pv(SB[0])
    a('s_min_u32', 's46', 's28', 4)
    a('s_mov_b32', 's47', 0)
    a('s_branch', Lf)
    a.label(Lb1)
    a('s_cmp_lt_u32', 's28', 5)
    a('s_cbranch_scc1', Lempty)
    down(5)
    readsK(AK0, AK1); readsV(AV)
    a('s_waitcnt', 'lgkmcnt(0)')
    init_max(SB[0], None)
    qk(SB[0]); check_now(SB[0]); softmax_pv(SB[0])
    a('s_sub_u32', 's46', 's28', 5)
    a('s_min_u32', 's46', 's46', 2)
    a('s_cmp_ge_u32', 's28', 8)
    a('s_cselect_b32', 's47', 1, 0)
    a.label(Lf)
    a('s_cmp_eq_u32', 's46', 0)
    a('s_cbranch_scc1', Lfe)
    down()
    readsK(AK0, AK1); readsV(AV)
    a('s_waitcnt', 'lgkmcnt(2)')
    qk(SB[0]); check_now(SB[0])
    a('s_waitcnt', 'lgkmcnt(0)')
    softmax_pv(SB[0])
    a('s_sub_u32', 's46', 's46', 1)
    a('s_branch', Lf)
    a.label(Lfe)
    a('s_cmp_eq_u32', 's47', 0)
    a('s_cbranch_scc1', Lbm)
    down()
    readsK(AK0, AK1); readsV(AV)
    a('s_waitcnt', 'lgkmcnt(0)')
    qk(SB[0]); check_now(SB[0], 'edge'); softmax_pv(SB[0])
    a('s_branch', Lbm)
    a.label(Lempty)
    a('v_mov_b32', vr(VM), 'v11')
    for r in range(12):
        a('v_mov_b32', vr(O + r), 0)
    a.label(Lbm)
    merge_epilogue('b', O_B, 0)
    if 'stamp' in EXP:
        stamp()
        a('s_waitcnt', 'vmcnt(0) lgkmcnt(0)')
        a('s_cmp_lg_u32', 's27', 0)
        a('s_cbranch_scc1', Lexit)
        a('v_mov_b32', 'v4', 's70')
        a('v_mov_b32', 'v5', sr(70 + 2 * (nst[0] - 1)))
        a('v_mov_b32', 'v6', 0)
        a('v_mov_b32', 'v7', 0)
        a('s_lshl_b32', 's98', 's2', 4)
        a('s_add_u32', 's98', 's98', 0x2010000)
        a('v_mov_b32', 'v2', 0)
        a('buffer_store_dwordx4', 'v[4:7]', 'v2', 's[20:23]', 's98', mods='offen')
        a('s_cmp_lg_u32', 's2', 0)
        a('s_cbranch_scc1', Lexit)
        a('s_load_dwordx2', 's[60:61]', 's[0:1]', 64)
        a('s_waitcnt', 'lgkmcnt(0)')
        srd(a, 64, 60, 256)
        for i in range(nst[0]):
            a('v_mov_b32', 'v1', sr(70 + 2 * i))
            a('v_mov_b32', 'v2', 4 * i)
            a('buffer_store_dword', 'v1', 'v2', 's[64:67]', 0, mods='offen')
    a.label(Lexit)
    a('s_endpgm')
    return name, 128

K3_XROW = 272
K3_WROW = 160
K3_XSZ = 64 * K3_XROW
K3_WSZ = 128 * K3_WROW
K3_BUF = K3_XSZ + K3_WSZ
K3_LDS = 2 * K3_BUF

def gen_k3(a):
    name = 'oproj_kernel'; a.cur = 'k3'
    header(a, name)
    Lexit = 'k3_exit'
    a('s_cmp_ge_u32', 's2', 320)
    a('s_cbranch_scc1', Lexit)
    st = Stamps(a, kid=2)
    st()
    a('s_load_dwordx2', 's[4:5]', 's[0:1]', 16)
    a('s_load_dwordx2', 's[6:7]', 's[0:1]', 40)
    a('s_load_dwordx2', 's[8:9]', 's[0:1]', 56)
    a('s_load_dwordx2', 's[10:11]', 's[0:1]', 72)
    a('s_waitcnt', 'lgkmcnt(0)')
    srd(a, 12, 4, 640 * 640 * 2)
    srd(a, 16, 6, 640 * 640 * 2)
    srd(a, 20, 10, WS_SIZE)
    srd(a, 24, 8, 2048 * 640 * 2)
    a('s_and_b32', 's28', 's2', 31)
    a('s_lshr_b32', 's29', 's2', 5)
    a('v_lshrrev_b32', 'v1', 6, 'v0')
    a('v_readfirstlane_b32', 's30', 'v1')
    a('s_and_b32', 's31', 's30', 1)
    a('s_lshr_b32', 's32', 's30', 1)
    a('s_lshl_b32', 's33', 's28', 6)
    a('v_lshrrev_b32', 'v2', 4, 'v0')
    a('v_add_u32', 'v2', 's33', 'v2')
    a('s_movk_i32', 's34', 1280)
    a('v_mul_lo_u32', 'v2', 'v2', 's34')
    a('v_and_b32', 'v3', 15, 'v0')
    a('v_lshl_add_u32', 'v2', 'v3', 4, 'v2')
    a('v_lshrrev_b32', 'v3', 3, 'v0')
    a('v_mul_lo_u32', 'v3', 'v3', 's34')
    a('v_and_b32', 'v4', 7, 'v0')
    a('v_lshl_add_u32', 'v3', 'v4', 4, 'v3')
    a('s_lshl_b32', 's35', 's29', 7)
    a('v_add_u32', 'v3', 's35', 'v3')
    a('v_lshrrev_b32', 'v4', 4, 'v0')
    a('v_mul_u32_u24', 'v4', K3_XROW, 'v4')
    a('v_and_b32', 'v5', 15, 'v0')
    a('v_lshl_add_u32', 'v4', 'v5', 4, 'v4')
    a('v_add_u32', 'v5', K3_BUF, 'v4')
    a('v_lshrrev_b32', 'v6', 3, 'v0')
    a('v_mul_u32_u24', 'v6', K3_WROW, 'v6')
    a('v_and_b32', 'v7', 7, 'v0')
    a('v_lshl_add_u32', 'v6', 'v7', 4, 'v6')
    a('v_add_u32', 'v6', K3_XSZ, 'v6')
    a('v_add_u32', 'v7', K3_BUF, 'v6')
    a('v_and_b32', 'v12', 63, 'v0')
    a('v_and_b32', 'v13', 31, 'v12')
    a('v_lshrrev_b32', 'v14', 5, 'v12')
    a('s_lshl_b32', 's34', 's31', 5)
    a('v_add_u32', 'v8', 's34', 'v13')
    a('v_mul_u32_u24', 'v8', K3_XROW, 'v8')
    a('v_lshl_add_u32', 'v8', 'v14', 4, 'v8')
    a('v_add_u32', 'v9', K3_BUF, 'v8')
    a('v_and_b32', 'v15', 15, 'v12')
    a('v_lshrrev_b32', 'v10', 2, 'v15')
    a('v_lshl_add_u32', 'v10', 'v14', 3, 'v10')
    a('v_mul_u32_u24', 'v10', K3_WROW, 'v10')
    a('v_bfe_u32', 'v11', 'v12', 4, 1)
    a('v_lshlrev_b32', 'v11', 4, 'v11')
    a('v_and_b32', 'v15', 3, 'v15')
    a('v_lshl_add_u32', 'v11', 'v15', 2, 'v11')
    a('s_lshl_b32', 's34', 's32', 5)
    a('v_add_u32', 'v11', 's34', 'v11')
    a('v_lshl_add_u32', 'v10', 'v11', 1, 'v10')
    a('v_add_u32', 'v10', K3_XSZ, 'v10')
    a('v_add_u32', 'v11', K3_BUF, 'v10')
    ACC = (64, 80); ST0 = 96; FX = 16; FW = 32
    NPF = 3
    a('s_lshl_b32', 's34', 's31', 5)
    a('s_add_u32', 's34', 's34', 's33')
    a('v_add_u32', 'v48', 's34', 'v13')
    a('v_lshlrev_b32', 'v49', 2, 'v48')
    a('s_mov_b32', 's36', G_OFF)
    a('buffer_load_dword', 'v50', 'v49', 's[20:23]', 's36', mods='offen')
    for r in range(16):
        a('v_mov_b32', vr(ACC[0] + r), 0)
        a('v_mov_b32', vr(ACC[1] + r), 0)

    def issue_loads(rs):
        ST = ST0 + 32 * rs
        a('s_cmp_ge_u32', 's46', 5)
        cs(a, 's44', O_B - 5 * 256, O_A)
        a('s_cselect_b32', 's60', 's16', 's12')
        a('s_cselect_b32', 's61', 's17', 's13')
        a('s_cselect_b32', 's47', 5 * 128 * 1280, 0)
        a('s_lshl_b32', 's45', 's46', 8)
        a('s_add_u32', 's44', 's44', 's45')
        for i in range(4):
            a('buffer_load_dwordx4', vr(ST + 4 * i, 4), 'v2', 's[20:23]', 's44', mods='offen')
            if i < 3: a('s_add_u32', 's44', 's44', 16 * 1280)
        a('s_mul_i32', 's45', 's46', 128 * 1280)
        a('s_sub_u32', 's45', 's45', 's47')
        for i in range(4):
            a('buffer_load_dwordx4', vr(ST + 16 + 4 * i, 4), 'v3', 's[60:63]', 's45', mods='offen')
            if i < 3: a('s_add_u32', 's45', 's45', 32 * 1280)
        a('s_add_u32', 's46', 's46', 1)
    def write_lds(buf, rs):
        ST = ST0 + 32 * rs
        for i in range(4):
            a('ds_write_b128', 'v%d' % (4 + buf), vr(ST + 4 * i, 4), mods='offset:%d' % (i * 16 * K3_XROW))
        for i in range(4):
            a('ds_write_b128', 'v%d' % (6 + buf), vr(ST + 16 + 4 * i, 4), mods='offset:%d' % (i * 32 * K3_WROW))
    def frag_reads(buf, ks, st):
        a('ds_read_b128', vr(FX + st * 4, 4), 'v%d' % (8 + buf), mods='offset:%d' % (ks * 32))
        for hf in range(2):
            a('ds_read_b64_tr_b16', vr(FW + st * 4 + hf * 2, 2), 'v%d' % (10 + buf),
              mods='offset:%d' % (ks * 16 * K3_WROW + hf * 4 * K3_WROW))
    a('s_mov_b32', 's62', 640 * 640 * 2)
    a('s_mov_b32', 's63', '0x00020000')
    a('s_mov_b32', 's46', 0)
    issue_loads(0); issue_loads(1)
    a('s_waitcnt', 'vmcnt(8)')
    write_lds(0, 0)
    a('s_waitcnt', 'lgkmcnt(0)')
    a('s_barrier')
    NS = 4
    acc = vr(ACC[1], 16)
    def stage(buf, issue, last=False):
        if issue: issue_loads(buf)
        for ks in range(3): frag_reads(buf, ks, ks % NS)
        for ks in range(8):
            if ks + 3 < 8:
                frag_reads(buf, ks + 3, (ks + 3) % NS)
                a('s_waitcnt', 'lgkmcnt(9)')
            else:
                a('s_waitcnt', 'lgkmcnt(%d)' % (3 * (7 - ks)))
            a('v_mfma_f32_32x32x16_bf16', acc, vr(FW + (ks % NS) * 4, 4), vr(FX + (ks % NS) * 4, 4), acc)
        if not last:
            a('s_waitcnt', 'vmcnt(%d)' % (8 if issue else 0))
            write_lds(1 - buf, 1 - buf)
            a('s_waitcnt', 'lgkmcnt(0)')
            a('s_barrier')
    st()
    a('s_mov_b32', 's48', 0)
    L = 'k3_loop'
    a.label(L)
    stage(0, True)
    sk = 'k3_noswitch'
    a('s_cmp_lg_u32', 's48', 2)
    a('s_cbranch_scc1', sk)
    for r in range(16):
        a('v_mov_b32', vr(ACC[0] + r), vr(ACC[1] + r))
    for r in range(16):
        a('v_mov_b32', vr(ACC[1] + r), 0)
    a.label(sk)
    stage(1, True)
    a('s_add_u32', 's48', 's48', 1)
    a('s_cmp_lt_u32', 's48', 4)
    a('s_cbranch_scc1', L)
    stage(0, False); stage(1, False, last=True)
    st()
    a('v_sub_f32', 'v51', '1.0', 'v50')
    for r in range(16):
        a('v_mul_f32', vr(ACC[0] + r), 'v50', vr(ACC[0] + r))
        a('v_fmac_f32', vr(ACC[0] + r), 'v51', vr(ACC[1] + r))
    a('s_movk_i32', 's34', 1280)
    a('v_mul_lo_u32', 'v52', 'v48', 's34')
    a('v_lshl_add_u32', 'v52', 'v14', 3, 'v52')
    a('s_lshl_b32', 's34', 's29', 7)
    a('s_lshl_b32', 's35', 's32', 6)
    a('s_add_u32', 's34', 's34', 's35')
    for rg in range(4):
        a('v_cvt_pk_bf16_f32', vr(54 + 2 * rg), vr(ACC[0] + 4 * rg), vr(ACC[0] + 4 * rg + 1))
        a('v_cvt_pk_bf16_f32', vr(55 + 2 * rg), vr(ACC[0] + 4 * rg + 2), vr(ACC[0] + 4 * rg + 3))
        a('buffer_store_dwordx2', vr(54 + 2 * rg, 2), 'v52', 's[24:27]', 's34', mods='offen offset:%d' % (16 * rg))
    st.dump(0, 's30', Lexit)
    a.label(Lexit)
    a('s_endpgm')
    return name, 160

class FAsm(Asm):
    cur = ''
    def __call__(self, op, *ops, mods=''):
        for tok in EXP.split(','):
            if ':' in tok:
                k, pre = tok.split(':')
                if k == self.cur and op.startswith(pre): return
        Asm.__call__(self, op, *ops, mods=mods)

def main(out):
    a = FAsm()
    hdr = '''; gated mix of full attention and sliding-window attention  (generated by gen/gen.py)
; @launch kernel=qkv_kernel grid=(%d,1,1) block=(256,1,1) lds=%d
; @launch kernel=attn_kernel grid=(256,1,1) block=(1024,1,1) lds=%d
; @launch kernel=oproj_kernel grid=(320,1,1) block=(256,1,1) lds=%d
.amdgcn_target "amdgcn-amd-amdhsa--gfx950"
.text
''' % (K1_NWG + K1_GATE_WG, K1_LDS, K2_LDS, K3_LDS)
    ks = [gen_k1(a), gen_k2(a), gen_k3(a)]
    txt = hdr + a.text() + '.section .rodata,"a"\n' + ''.join(descriptor(n, v) for n, v in ks)
    open(out, 'w').write(txt)

if __name__ == '__main__':
    main(sys.argv[1] if len(sys.argv) > 1 else 'gated_mix__mha_block__sliding_block__prompt.s')
```
